```python
import torch

def _softmax(x, axis=-1):
    return torch.softmax(x, dim=axis)
def _gelu(x):
    return torch.nn.functional.gelu(x, approximate="tanh")
def _silu(x):
    return torch.nn.functional.silu(x)
def _sigmoid(x):
    return torch.sigmoid(x)
def _layernorm(x, axis=-1, eps=1e-5):
    m = x.mean(dim=axis, keepdim=True)
    v = x.var(dim=axis, keepdim=True, unbiased=False)
    return (x - m) / torch.sqrt(v + eps)
def _scatter_add(tgt, idx, src, axis=0):
    return tgt.clone().index_add_(axis, idx, src)
def _segment_sum(src, seg, n):
    out = torch.zeros((n,) + src.shape[1:], dtype=src.dtype)
    return out.index_add_(0, seg, src)
def _pad(x, pw):
    flat = tuple(v for pair in reversed(pw) for v in pair)
    return torch.nn.functional.pad(x, flat)

kernel_name = 'parallel_sum__sliding_block_cached__dense_activation_gelu__decode'

def setup_inputs():

    _w = (lambda a: (lambda t: t.to(torch.bfloat16) if t.is_floating_point() else t)(torch.as_tensor(a)))
    def _A_setup():
        B, Sq, D = 1, 1, 640
        Hq, Hkv, Sk, Dh = 32, 32, 8192, 128
        assert Hq % Hkv == 0, (Hq, Hkv)
        return {
            "x": _w((lambda *s: torch.randn(*s, dtype=torch.bfloat16) * 0.05)(B, Sq, D)),
            "k_cache": _w((lambda *s: torch.randn(*s, dtype=torch.bfloat16) * 3.2)(B, Hkv, Sk, Dh)),
            "v_cache": _w((lambda *s: torch.randn(*s, dtype=torch.bfloat16) * 0.8)(B, Hkv, Sk, Dh)),
            "wq": _w((lambda *s: torch.randn(*s, dtype=torch.bfloat16) * 3.2)(D, Hq * Dh) * (D ** -0.5)),
            "wo": _w((lambda *s: torch.randn(*s, dtype=torch.bfloat16) * 0.8)(Hq * Dh, D) * ((Hq * Dh) ** -0.5)),
        }
    _A_in = _A_setup()

    def _B_setup():
        B, S, D, F = 1, 1, 640, 1728
        return {
            "x": _w((lambda *s: torch.randn(*s, dtype=torch.bfloat16) * 0.05)(B, S, D)),
            "w1": _w((lambda *s: torch.randn(*s, dtype=torch.bfloat16) * 0.8)(D, F) * (D ** -0.5)),
            "b1": _w((lambda *s: torch.randn(*s, dtype=torch.bfloat16) * 0.8)(F) * 0.01),
            "w2": _w((lambda *s: torch.randn(*s, dtype=torch.bfloat16) * 0.8)(F, D) * (F ** -0.5)),
            "b2": _w((lambda *s: torch.randn(*s, dtype=torch.bfloat16) * 0.8)(D) * 0.01),
        }
    _B_in = _B_setup()

    return {
        "A_x": _A_in["x"],
        "A_k_cache": _A_in["k_cache"],
        "A_v_cache": _A_in["v_cache"],
        "A_wq": _A_in["wq"],
        "A_wo": _A_in["wo"],
        "B_x": _B_in["x"],
        "B_w1": _B_in["w1"],
        "B_b1": _B_in["b1"],
        "B_w2": _B_in["w2"],
        "B_b2": _B_in["b2"],
    }

def reference(A_x, A_k_cache, A_v_cache, A_wq, A_wo, B_x, B_w1, B_b1, B_w2, B_b2):
    def _A_ref(x, k_cache, v_cache, wq, wo):
        B, Sq, D = x.shape
        Hq, Dh = 32, 128
        Hkv, Sk = k_cache.shape[1], k_cache.shape[2]
        W = min(4096, max(256, Sk // 4))
        rep = Hq // Hkv
        q = (lambda x, *d: x.permute(*d))((x @ wq).reshape(B, Sq, Hq, Dh), 0, 2, 1, 3)
        k = (lambda x, n, axis: torch.repeat_interleave(x, n, dim=axis))(k_cache[:, :, Sk - W:, :], rep, axis=1)
        v = (lambda x, n, axis: torch.repeat_interleave(x, n, dim=axis))(v_cache[:, :, Sk - W:, :], rep, axis=1)
        scores = torch.einsum("bhqd,bhkd->bhqk", q, k) * (Dh ** -0.5)
        p = _softmax(scores, axis=-1)
        o = torch.einsum("bhqk,bhkd->bhqd", p, v)
        return (lambda x, *d: x.permute(*d))(o, 0, 2, 1, 3).reshape(B, Sq, Hq * Dh) @ wo

    def _B_ref(x, w1, b1, w2, b2):
        h = torch.einsum("bsd,df->bsf", x, w1) + b1
        h = _gelu(h)
        return torch.einsum("bsf,fd->bsd", h, w2) + b2

    x = A_x
    xn = _layernorm(x, axis=-1)
    return x + _A_ref(xn, A_k_cache, A_v_cache, A_wq, A_wo) + _B_ref(xn, B_w1, B_b1, B_w2, B_b2)
```

```python
import sys, argparse

NAME = "parallel_sum__sliding_block_cached__dense_activation_gelu__decode_kernel"
HEADER = open("parallel_sum__sliding_block_cached__dense_activation_gelu__decode.s.ref").read().split("; Override launch")[0]

ap = argparse.ArgumentParser()
ap.add_argument("--stamps", action="store_true")
ap.add_argument("--vpos", default="afterB1")
ap.add_argument("--wpos", default="afterB2")
ap.add_argument("--nt", action="store_true")
ap.add_argument("--out", default="/dev/stdout")
A = ap.parse_args()

L = []
def e(s=""): L.append("    " + s)
def lab(s): L.append(s + ":")
NT = " nt" if A.nt else ""

EPOCH = 0
H1Q = 0x1000
H1H = 0x41000
H2 = 0x61000
H3 = 0x62000
H4 = 0xA2000
STAMP = 0x100000
WS_BYTES = 0x200000
ACC1 = 0
ACCO = 768
ACCA = 1280
ACCY = 1792
XDUP = 2304
MSLOT = 2816
LSLOT = 2820
ZEND = 3072
QB = 3072
ODUP = 3328
HDUP = 3840
LDS_BYTES = 4096

sWAVE, sH, sS = 3, 4, 5
SRD_K, SRD_V, SRD_WQ, SRD_W1, SRD_WO, SRD_W2 = 8, 12, 16, 20, 24, 28
SRD_WS, SRD_X, SRD_B1, SRD_B2, SRD_OUT = 32, 36, 40, 44, 48
nstamp = [0]
STAMP_S0 = 72
def stamp():
    if A.stamps:
        k = nstamp[0]; nstamp[0] += 1
        assert STAMP_S0 + 2*k + 1 <= 99
        e(f"s_memrealtime s[{STAMP_S0+2*k}:{STAMP_S0+2*k+1}]")
def srd(r): return f"s[{r}:{r+3}]"

def flush_stamps(slot_expr_setup, extra=()):
    if not A.stamps: return
    e("s_waitcnt lgkmcnt(0)")
    e("v_mov_b32 v1, 0")
    for k in range(nstamp[0]):
        e(f"v_writelane_b32 v1, s{STAMP_S0+2*k}, {k}")
    for j, r in enumerate(extra):
        e(f"v_writelane_b32 v1, s{r}, {14+j}" if False else f"v_writelane_b32 v1, s{r}, {nstamp[0]+j}")
    e("s_mov_b64 exec, 0xffff")
    e("v_mbcnt_lo_u32_b32 v2, -1, 0")
    e("v_lshlrev_b32 v2, 2, v2")
    slot_expr_setup()
    e(f"buffer_store_dword v1, v2, {srd(SRD_WS)}, s60 offen")
    e("s_waitcnt vmcnt(0)")

lab(NAME)
e("s_cmp_ge_u32 s2, 256")
e("s_cbranch_scc1 L_end")
e(f"s_load_dwordx2 s[{SRD_WQ}:{SRD_WQ+1}], s[0:1], 24")
e(f"s_load_dwordx2 s[{SRD_W1}:{SRD_W1+1}], s[0:1], 48")
e(f"s_load_dwordx2 s[{SRD_K}:{SRD_K+1}], s[0:1], 8")
e(f"s_load_dwordx2 s[{SRD_V}:{SRD_V+1}], s[0:1], 16")
e(f"s_load_dwordx2 s[{SRD_WO}:{SRD_WO+1}], s[0:1], 32")
e(f"s_load_dwordx2 s[{SRD_W2}:{SRD_W2+1}], s[0:1], 64")
e(f"s_load_dwordx2 s[{SRD_WS}:{SRD_WS+1}], s[0:1], 96")
e("v_lshrrev_b32 v1, 6, v0")
e("v_and_b32 v0, 63, v0")
e(f"v_readfirstlane_b32 s{sWAVE}, v1")
e(f"s_and_b32 s{sH}, s2, 31")
e(f"s_lshr_b32 s{sS}, s2, 5")
e(f"s_mov_b32 s{SRD_WS+2}, {WS_BYTES}")
e(f"s_mov_b32 s{SRD_WS+3}, 0x20000")
e(f"s_cmp_eq_u32 s{sWAVE}, 8")
e("s_cbranch_scc1 L_sync")

stamp()
vL = 0
vOQ, vO1, vOK, vOV, vOW = 1, 2, 3, 4, 5
vM = [6, 7, 8, 9]
vT = [10, 11, 12, 13, 14, 15]
vA1, vAO, vAX, vAQ, vAW, vAH = 16, 17, 18, 19, 20, 21
vW = [24 + 4*i for i in range(6)]
vK = [48 + 4*i for i in range(8)]
vV = [80 + 4*i for i in range(8)]
vQB = [112 + 4*i for i in range(4)]
vB = [128, 132, 136]
vD = [140, 144, 148, 152]
NV = 156
def r4(b): return f"v[{b}:{b+3}]"

e(f"v_lshrrev_b32 v{vT[0]}, 3, v{vL}")
e(f"v_and_b32 v{vT[1]}, 7, v{vL}")
e(f"v_lshlrev_b32 v{vT[1]}, 4, v{vT[1]}")
e(f"v_lshl_add_u32 v{vOQ}, v{vT[0]}, 13, v{vT[1]}")
e(f"v_mul_u32_u24 v{vO1}, 3456, v{vT[0]}")
e(f"v_add_u32 v{vO1}, v{vO1}, v{vT[1]}")
e(f"s_mul_i32 s52, s{sS}, 80")
e(f"s_lshl_b32 s53, s{sWAVE}, 3")
e("s_add_u32 s52, s52, s53")
e("s_lshl_b32 s54, s52, 13")
e(f"s_lshl_b32 s53, s{sH}, 8")
e("s_add_u32 s54, s54, s53")
e("s_mul_i32 s55, s52, 3456")
e(f"s_lshl_b32 s53, s{sH}, 7")
e("s_add_u32 s55, s55, s53")
e(f"s_cmp_lt_u32 s{sWAVE}, 2")
e("s_cselect_b32 s53, 0, 0x40000000")
e("s_add_u32 s56, s54, s53")
e(f"s_add_u32 s56, s56, {64*8192}")
e("s_add_u32 s57, s55, s53")
e(f"s_add_u32 s57, s57, {64*3456}")
e(f"s_mov_b32 s{SRD_WQ+2}, {640*4096*2}")
e(f"s_mov_b32 s{SRD_WQ+3}, 0x20000")
e(f"s_cmp_lt_u32 s{sH}, 27")
e(f"s_cselect_b32 s{SRD_W1+2}, {640*1728*2}, 0")
e(f"s_mov_b32 s{SRD_W1+3}, 0x20000")
e(f"s_mov_b32 s{SRD_K+2}, 0x4000000")
e(f"s_mov_b32 s{SRD_K+3}, 0x20000")
e(f"s_mov_b32 s{SRD_V+2}, 0x4000000")
e(f"s_mov_b32 s{SRD_V+3}, 0x20000")
e(f"s_lshl_b32 s58, s{sH}, 21")
e(f"s_lshl_b32 s53, s{sS}, 16")
e("s_add_u32 s58, s58, s53")
e(f"s_lshl_b32 s53, s{sWAVE}, 13")
e("s_add_u32 s58, s58, s53")
e(f"s_add_u32 s58, s58, {6144*256}")
e("s_add_u32 s59, s58, 4096")
e(f"v_bfe_u32 v{vT[0]}, v{vL}, 2, 2")
e(f"v_lshrrev_b32 v{vT[1]}, 4, v{vL}")
e(f"v_and_b32 v{vT[2]}, 3, v{vL}")
e(f"v_lshlrev_b32 v{vOK}, 8, v{vT[0]}")
e(f"v_lshl_add_u32 v{vOK}, v{vT[1]}, 6, v{vOK}")
e(f"v_lshl_add_u32 v{vOK}, v{vT[2]}, 4, v{vOK}")
e(f"v_lshlrev_b32 v{vOV}, 4, v{vL}")
e("s_waitcnt lgkmcnt(0)")
e(f"buffer_load_dwordx4 {r4(vW[0])}, v{vOQ}, {srd(SRD_WQ)}, s54 offen{NT}")
e(f"buffer_load_dwordx4 {r4(vW[1])}, v{vOQ}, {srd(SRD_WQ)}, s54 offen offset:128{NT}")
e(f"buffer_load_dwordx4 {r4(vW[2])}, v{vO1}, {srd(SRD_W1)}, s55 offen{NT}")
e(f"buffer_load_dwordx4 {r4(vW[3])}, v{vOQ}, {srd(SRD_WQ)}, s56 offen{NT}")
e(f"buffer_load_dwordx4 {r4(vW[4])}, v{vOQ}, {srd(SRD_WQ)}, s56 offen offset:128{NT}")
e(f"buffer_load_dwordx4 {r4(vW[5])}, v{vO1}, {srd(SRD_W1)}, s57 offen{NT}")
vm = []
vm += ["w0", "w1", "w2", "w3", "w4", "w5"]
def load_k():
    for t in range(8):
        e(f"buffer_load_dwordx4 {r4(vK[t])}, v{vOK}, {srd(SRD_K)}, s{58 + t//4} offen offset:{(t%4)*1024}{NT}")
        vm.append(f"k{t}")
def load_v():
    for t in range(8):
        e(f"buffer_load_dwordx4 {r4(vV[t])}, v{vOV}, {srd(SRD_V)}, s{58 + t//4} offen offset:{(t%4)*1024}{NT}")
        vm.append(f"v{t}")
def load_w():
    for u in range(2):
        e(f"buffer_load_dwordx4 {r4(vW[4+u])}, v{vOW}, {srd(SRD_W2)}, s{66+u} offen")
        vm.append(f"y{u}")
    for u in range(4):
        e(f"buffer_load_dwordx4 {r4(vW[u])}, v{vOW}, {srd(SRD_WO)}, s{62+u} offen")
        vm.append(f"a{u}")
def wait_vm(name):
    idx = vm.index(name)
    n = len(vm) - 1 - idx
    e(f"s_waitcnt vmcnt({n})")
load_k()
if A.vpos == "start": load_v()
stamp()
e(f"s_mov_b32 s{SRD_WO+2}, {4096*640*2}")
e(f"s_mov_b32 s{SRD_WO+3}, 0x20000")
e(f"s_mov_b32 s{SRD_W2+2}, {1728*640*2}")
e(f"s_mov_b32 s{SRD_W2+3}, 0x20000")
e(f"s_lshl_b32 s52, s{sH}, 7")
e(f"s_lshl_b32 s53, s{sWAVE}, 4")
e("s_add_u32 s52, s52, s53")
e("s_mul_i32 s62, s52, 1280")
e(f"s_mul_i32 s53, s{sS}, 160")
e("s_add_u32 s62, s62, s53")
e("s_add_u32 s63, s62, 5120")
e("s_add_u32 s64, s62, 10240")
e("s_add_u32 s65, s62, 15360")
e("s_lshr_b32 s52, s52, 1")
e("s_mul_i32 s66, s52, 1280")
e("s_add_u32 s66, s66, s53")
e("s_add_u32 s67, s66, 5120")
e(f"v_and_b32 v{vT[3]}, 15, v{vL}")
e(f"v_mul_u32_u24 v{vOW}, 1280, v{vT[1]}")
e(f"v_lshl_add_u32 v{vOW}, v{vT[3]}, 4, v{vOW}")
e(f"v_cmp_lt_u32 vcc, 9, v{vT[3]}")
e(f"v_mov_b32 v{vT[4]}, 0x40000000")
e("s_nop 0")
e(f"v_cndmask_b32 v{vOW}, v{vOW}, v{vT[4]}, vcc")
e(f"v_and_b32 v{vT[3]}, 1, v{vL}")
e(f"v_lshlrev_b32 v{vT[4]}, 4, v{vT[3]}")
e(f"v_mov_b32 v{vT[5]}, 0xffff")
e(f"v_lshlrev_b32 v{vT[5]}, v{vT[4]}, v{vT[5]}")
for i in range(4):
    e(f"v_cmp_eq_u32 vcc, {i}, v{vT[0]}")
    e("s_nop 1")
    e(f"v_cndmask_b32 v{vM[i]}, 0, v{vT[5]}, vcc")
e(f"v_lshlrev_b32 v{vAO}, 2, v{vT[3]}")
e(f"v_lshl_add_u32 v{vAO}, v{vT[0]}, 3, v{vAO}")
e(f"v_and_b32 v{vT[4]}, 1, v{vT[1]}")
e(f"v_lshl_add_u32 v{vA1}, v{vT[4]}, 7, v{vAO}")
e(f"v_lshl_add_u32 v{vAO}, v{vT[1]}, 7, v{vAO}")
e(f"v_bfe_u32 v{vT[4]}, v{vL}, 1, 1")
e(f"v_lshl_add_u32 v{vAX}, v{vT[1]}, 1, v{vT[4]}")
e(f"s_lshl_b32 s53, s{sWAVE}, 3")
e(f"v_add_lshl_u32 v{vAX}, v{vAX}, s53, 2")
e(f"v_lshl_add_u32 v{vAW}, v{vT[4]}, 2, v{vT[1]}")
e(f"v_add_lshl_u32 v{vAH}, v{vAW}, s53, 2")
e(f"s_lshl_b32 s53, s{sWAVE}, 4")
e(f"v_add_lshl_u32 v{vAW}, v{vAW}, s53, 2")
e(f"v_lshl_add_u32 v{vAQ}, v{vT[1]}, 2, v{vT[2]}")
e(f"v_lshlrev_b32 v{vAQ}, 4, v{vAQ}")
for t in range(4):
    for r in range(4):
        e(f"v_mov_b32 v{vQB[t]+r}, 0")
e("s_barrier")
e(f"ds_read_b32 v{vT[0]}, v{vAX} offset:{XDUP}")
e(f"ds_read_b32 v{vT[1]}, v{vAX} offset:{XDUP+256}")
e("s_waitcnt lgkmcnt(0)")
for i in range(4):
    e(f"v_and_b32 v{vB[0]+i}, v{vT[0]}, v{vM[i]}")
for i in range(4):
    e(f"v_and_b32 v{vB[1]+i}, v{vT[1]}, v{vM[i]}")
for j in range(6):
    wait_vm(f"w{j}")
    c = "0" if j < 3 else r4(vD[j % 3])
    e(f"v_mfma_f32_16x16x32_bf16 {r4(vD[j%3])}, {r4(vW[j])}, {r4(vB[j//3])}, {c}")
stamp()
e("s_mov_b32 exec_lo, 0x33333333")
e("s_mov_b32 exec_hi, 0xcccccccc")
e("s_nop 7")
for a in range(3):
    for r in range(4):
        e(f"ds_add_f32 v{vA1}, v{vD[a]+r} offset:{ACC1 + a*256 + r*32}")
e("s_mov_b64 exec, -1")
e("s_waitcnt lgkmcnt(0)")
e("s_barrier")
if A.vpos == "afterB1": load_v()
if A.wpos == "afterB1": load_w()
e("s_barrier")
for t in range(4):
    m = 0x000f000f << (4*t)
    e(f"s_mov_b32 exec_lo, {m:#x}")
    e(f"s_mov_b32 exec_hi, {m:#x}")
    e(f"ds_read_b128 {r4(vQB[t])}, v{vAQ} offset:{QB}")
e("s_mov_b64 exec, -1")
if A.wpos == "afterB2": load_w()
e("s_waitcnt lgkmcnt(0)")
for t in range(8):
    wait_vm(f"k{t}")
    d = vD[t//4]
    c = "0" if t % 4 == 0 else r4(d)
    e(f"v_mfma_f32_16x16x32_bf16 {r4(d)}, {r4(vK[t])}, {r4(vQB[t%4])}, {c}")
stamp()
e("s_mov_b32 s68, 0xcccccccc")
e("s_mov_b32 s69, 0xcccccccc")
e("s_nop 5")
for k in range(2):
    e(f"v_mov_b32_dpp v{vT[k]}, v{vD[k]} quad_perm:[0,0,0,0] row_mask:0xf bank_mask:0xf")
for c in range(1, 4):
    for k in range(2):
        e(f"v_add_f32_dpp v{vT[k]}, v{vD[k]+c}, v{vT[k]} quad_perm:[{c},{c},{c},{c}] row_mask:0xf bank_mask:0xf")
e(f"v_cndmask_b32 v{vT[0]}, v{vT[0]}, v{vT[1]}, s[68:69]")
e(f"v_cvt_pk_bf16_f32 v{vT[0]}, v{vT[0]}, v{vT[0]}")
e(f"v_and_b32 v{vT[0]}, 0xffff0000, v{vT[0]}")
e(f"v_mul_f32 v{vT[0]}, 0x3db504f3, v{vT[0]}")
e(f"v_cvt_pk_bf16_f32 v{vT[0]}, v{vT[0]}, v{vT[0]}")
e(f"v_and_b32 v{vT[0]}, 0xffff0000, v{vT[0]}")
e("s_nop 1")
e(f"v_max_f32_dpp v{vT[1]}, v{vT[0]}, v{vT[0]} quad_perm:[2,3,0,1] row_mask:0xf bank_mask:0xf")
e("s_nop 1")
e(f"v_max_f32_dpp v{vT[1]}, v{vT[1]}, v{vT[1]} row_ror:4 row_mask:0xf bank_mask:0xf")
e("s_nop 1")
e(f"v_max_f32_dpp v{vT[1]}, v{vT[1]}, v{vT[1]} row_ror:8 row_mask:0xf bank_mask:0xf")
e(f"v_mov_b32 v{vT[2]}, 0")
e("s_mov_b32 exec_lo, 0x00010001")
e("s_mov_b32 exec_hi, 0x00010001")
e(f"ds_max_f32 v{vT[2]}, v{vT[1]} offset:{MSLOT}")
e("s_mov_b64 exec, -1")
e("s_waitcnt lgkmcnt(0)")
e("s_barrier")
e(f"ds_read_b32 v{vT[1]}, v{vT[2]} offset:{MSLOT}")
e(f"ds_read_b32 v{vT[5]}, v{vAH} offset:{HDUP}")
e("s_waitcnt lgkmcnt(0)")
e(f"v_sub_f32 v{vT[0]}, v{vT[0]}, v{vT[1]}")
e(f"v_mul_f32 v{vT[0]}, 0x3fb8aa3b, v{vT[0]}")
e(f"v_exp_f32 v{vT[0]}, v{vT[0]}")
e("s_nop 1")
e(f"v_add_f32_dpp v{vT[1]}, v{vT[0]}, v{vT[0]} quad_perm:[2,3,0,1] row_mask:0xf bank_mask:0xf")
e(f"v_cvt_pk_bf16_f32 v{vT[3]}, v{vT[0]}, v{vT[0]}")
e("s_nop 0")
e(f"v_add_f32_dpp v{vT[1]}, v{vT[1]}, v{vT[1]} row_ror:4 row_mask:0xf bank_mask:0xf")
e("s_nop 1")
e(f"v_add_f32_dpp v{vT[1]}, v{vT[1]}, v{vT[1]} row_ror:8 row_mask:0xf bank_mask:0xf")
e("s_mov_b32 exec_lo, 0x00010001")
e("s_mov_b32 exec_hi, 0x00010001")
e(f"ds_add_f32 v{vT[2]}, v{vT[1]} offset:{LSLOT}")
e("s_mov_b64 exec, -1")
e("s_waitcnt lgkmcnt(0)")
e("s_barrier")
if A.wpos == "afterB4": load_w()
for t in range(4):
    for i in range(4):
        n = 4*((i - t) & 3)
        if n == 0:
            e(f"v_and_b32 v{vK[t]+i}, v{vT[3]}, v{vM[i]}")
        else:
            e(f"v_and_b32_dpp v{vK[t]+i}, v{vT[3]}, v{vM[i]} row_ror:{n} row_mask:0xf bank_mask:0xf")
for i in range(4):
    e(f"v_and_b32 v{vB[2]+i}, v{vT[5]}, v{vM[i]}")
for u in range(8):
    wait_vm(f"v{u}")
    d = vD[u//4]
    c = "0" if u % 4 == 0 else r4(d)
    e(f"v_mfma_f32_16x16x32_bf16 {r4(d)}, {r4(vV[u])}, {r4(vK[u%4])}, {c}")
stamp()
e("s_nop 7")
for r in range(4):
    e(f"v_add_f32_dpp v{vD[0]+r}, v{vD[1]+r}, v{vD[0]+r} quad_perm:[2,3,0,1] row_mask:0xf bank_mask:0xf")
e("s_mov_b32 exec_lo, 0x33333333")
e("s_mov_b32 exec_hi, 0x33333333")
for r in range(4):
    e(f"ds_add_f32 v{vAO}, v{vD[0]+r} offset:{ACCO + r*32}")
e("s_mov_b64 exec, -1")
e("s_waitcnt lgkmcnt(0)")
e("s_barrier")
for u in range(2):
    wait_vm(f"y{u}")
    e(f"v_mfma_f32_16x16x32_bf16 {r4(vD[2+u])}, {r4(vW[4+u])}, {r4(vB[2])}, 0")
e("s_nop 7")
for r in range(4):
    e(f"v_add_f32_dpp v{vD[2]+r}, v{vD[3]+r}, v{vD[2]+r} quad_perm:[2,3,0,1] row_mask:0xf bank_mask:0xf")
e("s_mov_b32 exec_lo, 0x33333333")
e("s_mov_b32 exec_hi, 0x33333333")
for r in range(4):
    e(f"ds_add_f32 v{vAO}, v{vD[2]+r} offset:{ACCY + r*32}")
e("s_mov_b64 exec, -1")
e("s_waitcnt vmcnt(0) lgkmcnt(0)")
stamp()
e("s_barrier")
e(f"ds_read_b32 v{vT[0]}, v{vAW} offset:{ODUP}")
e(f"ds_read_b32 v{vT[1]}, v{vAW} offset:{ODUP+32}")
e("s_waitcnt lgkmcnt(0)")
for k in range(2):
    for i in range(4):
        e(f"v_and_b32 v{vB[k]+i}, v{vT[k]}, v{vM[i]}")
e("s_nop 0")
for u in range(4):
    d = vD[u % 2]
    c = "0" if u < 2 else r4(d)
    e(f"v_mfma_f32_16x16x32_bf16 {r4(d)}, {r4(vW[u])}, {r4(vB[u//2])}, {c}")
e("s_nop 7")
for r in range(4):
    e(f"v_add_f32_dpp v{vD[0]+r}, v{vD[1]+r}, v{vD[0]+r} quad_perm:[2,3,0,1] row_mask:0xf bank_mask:0xf")
e("s_mov_b32 exec_lo, 0x33333333")
e("s_mov_b32 exec_hi, 0x33333333")
for r in range(4):
    e(f"ds_add_f32 v{vAO}, v{vD[0]+r} offset:{ACCA + r*32}")
e("s_waitcnt lgkmcnt(0)")
e("s_barrier")
if A.stamps:
    stamp()
    e(f"s_cmp_lg_u32 s{sWAVE}, 0")
    e("s_cbranch_scc1 L_end")
    def setup():
        e("s_lshl_b32 s60, s2, 7")
        e(f"s_add_u32 s60, s60, {STAMP}")
    flush_stamps(setup)
e("s_endpgm")

nstamp[0] = 0
lab("L_sync")
e("s_setprio 3")
stamp()
e(f"s_load_dwordx2 s[{SRD_X}:{SRD_X+1}], s[0:1], 0")
e(f"s_load_dwordx2 s[{SRD_B1}:{SRD_B1+1}], s[0:1], 56")
e(f"s_load_dwordx2 s[{SRD_B2}:{SRD_B2+1}], s[0:1], 72")
e(f"s_load_dwordx2 s[{SRD_OUT}:{SRD_OUT+1}], s[0:1], 80")
e(f"s_mov_b32 s{SRD_X+2}, 1280")
e(f"s_mov_b32 s{SRD_X+3}, 0x20000")
e(f"s_mov_b32 s{SRD_B1+2}, 3456")
e(f"s_mov_b32 s{SRD_B1+3}, 0x20000")
e(f"s_mov_b32 s{SRD_B2+2}, 1280")
e(f"s_mov_b32 s{SRD_B2+3}, 0x20000")
e(f"s_mov_b32 s{SRD_OUT+2}, 1280")
e(f"s_mov_b32 s{SRD_OUT+3}, 0x20000")
sTAG = 6
e("v_lshlrev_b32 v1, 4, v0")
e("v_lshlrev_b32 v2, 2, v0")
e(f"s_mul_i32 s52, s{sS}, 160")
e(f"s_lshl_b32 s53, s{sH}, 7")
e(f"s_lshl_b32 s54, s{sH}, 3")
e("s_add_u32 s54, s54, s52")
e("v_and_b32 v3, 3, v0")
e("v_lshlrev_b32 v3, 1, v3")
e("v_and_b32 v4, 31, v0")
e("v_lshlrev_b32 v5, 4, v4")
e("v_lshlrev_b32 v4, 2, v4")
e("s_waitcnt lgkmcnt(0)")
e(f"buffer_load_dwordx4 v[8:11], v1, {srd(SRD_X)}, 0 offen")
e(f"buffer_load_dword v12, v2, {srd(SRD_X)}, 0 offen offset:1024")
e(f"buffer_load_dword v13, v2, {srd(SRD_X)}, s52 offen")
e(f"s_load_dword s{sTAG}, s[{SRD_WS}:{SRD_WS+1}], {EPOCH}")
e(f"buffer_load_dword v14, v4, {srd(SRD_B1)}, s53 offen")
e(f"buffer_load_ushort v15, v3, {srd(SRD_X)}, s54 offen")
e(f"buffer_load_ushort v16, v3, {srd(SRD_B2)}, s54 offen")
for r in range(20, 24): e(f"v_mov_b32 v{r}, 0")
for k in range(3):
    e(f"ds_write_b128 v1, v[20:23] offset:{k*1024}")
e("v_mov_b32 v24, 0xff800000")
e(f"ds_write_b32 v20, v24 offset:{MSLOT}")
e("s_waitcnt vmcnt(3)")
src = [8, 9, 10, 11, 12]
for k, r in enumerate(src):
    e(f"v_lshlrev_b32 v{24+2*k}, 16, v{r}")
    e(f"v_and_b32 v{25+2*k}, 0xffff0000, v{r}")
e("v_readfirstlane_b32 s55, v24")
e("s_nop 1")
for k in range(10):
    e(f"v_subrev_f32 v{24+k}, s55, v{24+k}")
e("v_add_f32 v34, v24, v25")
e("v_mul_f32 v35, v24, v24")
e("v_fmac_f32 v35, v25, v25")
for k in range(2, 10):
    e(f"v_add_f32 v34, v34, v{24+k}")
    e(f"v_fmac_f32 v35, v{24+k}, v{24+k}")
for ctl in ["quad_perm:[1,0,3,2]", "quad_perm:[2,3,0,1]", "row_half_mirror", "row_mirror"]:
    e("s_nop 0")
    e(f"v_add_f32_dpp v34, v34, v34 {ctl} row_mask:0xf bank_mask:0xf")
    e(f"v_add_f32_dpp v35, v35, v35 {ctl} row_mask:0xf bank_mask:0xf")
for sw in ["v_permlane16_swap_b32", "v_permlane32_swap_b32"]:
    e("v_mov_b32 v36, v34")
    e("v_mov_b32 v37, v35")
    e("s_nop 1")
    e(f"{sw} v34, v36")
    e(f"{sw} v35, v37")
    e("s_nop 1")
    e("v_add_f32 v34, v34, v36")
    e("v_add_f32 v35, v35, v37")
import struct
def f2u(x): return struct.unpack("<I", struct.pack("<f", x))[0]
e(f"v_mul_f32 v34, {f2u(1/640):#x}, v34")
e(f"v_mul_f32 v35, {f2u(1/640):#x}, v35")
e("v_fma_f32 v35, -v34, v34, v35")
e("v_max_f32 v35, 0, v35")
e("v_add_f32 v34, s55, v34")
e("v_cvt_pk_bf16_f32 v34, v34, v35")
e("v_and_b32 v35, 0xffff0000, v34")
e("v_lshlrev_b32 v34, 16, v34")
e(f"v_add_f32 v35, {f2u(1e-5):#x}, v35")
e("v_cvt_pk_bf16_f32 v35, v35, v35")
e("v_and_b32 v35, 0xffff0000, v35")
e("v_sqrt_f32 v35, v35")
e("v_lshlrev_b32 v36, 16, v13")
e("v_cvt_pk_bf16_f32 v35, v35, v35")
e("v_and_b32 v35, 0xffff0000, v35")
e("v_rcp_f32 v35, v35")
e("v_and_b32 v37, 0xffff0000, v13")
e("v_sub_f32 v36, v36, v34")
e("v_sub_f32 v37, v37, v34")
e("v_cvt_pk_bf16_f32 v36, v36, v37")
e("v_and_b32 v37, 0xffff0000, v36")
e("v_lshlrev_b32 v36, 16, v36")
e("v_mul_f32 v36, v36, v35")
e("v_mul_f32 v37, v37, v35")
e("v_cvt_pk_bf16_f32 v36, v36, v36")
e("v_cvt_pk_bf16_f32 v37, v37, v37")
e("v_lshlrev_b32 v6, 3, v0")
e("s_mov_b32 exec_lo, -1")
e("s_mov_b32 exec_hi, 0xff")
e(f"ds_write_b64 v6, v[36:37] offset:{XDUP}")
e("s_mov_b64 exec, -1")
e("s_waitcnt lgkmcnt(0)")
e("s_barrier")
stamp()
e(f"s_mul_i32 s{sTAG}, s{sTAG}, 1664525")
e(f"s_add_u32 s{sTAG}, s{sTAG}, 1013904223")
e(f"s_lshl_b32 s56, s{sH}, 3")
e(f"s_add_u32 s57, s56, s{sS}")
e("s_lshl_b32 s58, s57, 10")
e(f"s_add_u32 s58, s58, {H1Q}")
e("s_lshl_b32 s59, s57, 9")
e(f"s_add_u32 s59, s59, {H1H}")
e("s_lshl_b32 s60, s56, 10")
e(f"s_add_u32 s60, s60, {H1Q}")
e("s_add_u32 s61, s60, 4096")
e("s_lshl_b32 s62, s56, 9")
e(f"s_add_u32 s62, s62, {H1H}")
e(f"v_mov_b32 v41, s{sTAG}")
e(f"v_mov_b32 v43, s{sTAG}")
e(f"v_mov_b32 v45, s{sTAG}")
e(f"v_mov_b32 v47, s{sTAG}")
e("s_mov_b32 s70, 0")
e("s_mov_b32 s71, 0")
e("s_barrier")
stamp()
e(f"ds_read_b64 v[48:49], v6 offset:{ACC1}")
e(f"ds_read_b64 v[50:51], v6 offset:{ACC1+512}")
e("s_waitcnt lgkmcnt(1)")
e("v_mov_b32 v40, v48")
e("v_mov_b32 v42, v49")
e(f"buffer_store_dwordx4 v[40:43], v1, {srd(SRD_WS)}, s58 offen sc1")
e("s_waitcnt lgkmcnt(0)")
e("v_mov_b32 v44, v50")
e("v_mov_b32 v46, v51")
e("s_mov_b32 exec_hi, 0")
e(f"buffer_store_dwordx4 v[44:47], v1, {srd(SRD_WS)}, s59 offen sc1")
e("s_mov_b64 exec, -1")

MAXSPIN = 100000
_pl = [0]
def poll(loads, cnt_sreg, lanes_lo=-1, lanes_hi=-1):
    k = _pl[0]; _pl[0] += 1
    e(f"s_mov_b32 s7, 0")
    lab(f"L_poll{k}")
    if (lanes_lo, lanes_hi) != (-1, -1):
        e(f"s_mov_b32 exec_lo, {lanes_lo:#x}")
        e(f"s_mov_b32 exec_hi, {lanes_hi:#x}")
    for (r, vo, so, imm) in loads:
        e(f"buffer_load_dwordx4 v[{r}:{r+3}], v{vo}, {srd(SRD_WS)}, s{so} offen offset:{imm} sc1")
    e("s_mov_b64 s[64:65], exec")
    for j, (r, vo, so, imm) in enumerate(loads):
        e(f"s_waitcnt vmcnt({len(loads)-1-j})")
        e(f"v_cmpx_eq_u32 vcc, s{sTAG}, v{r+1}")
        e(f"v_cmpx_eq_u32 vcc, s{sTAG}, v{r+3}")
    e("s_add_u32 s7, s7, 1")
    e("s_nop 3")
    e("s_cmp_eq_u64 s[64:65], exec")
    e("s_mov_b64 exec, -1")
    e(f"s_cbranch_scc1 L_polldone{k}")
    e(f"s_cmp_lt_u32 s7, {MAXSPIN}")
    e("s_sleep 1")
    e(f"s_cbranch_scc1 L_poll{k}")
    e("s_endpgm")
    lab(f"L_polldone{k}")
    if A.stamps:
        e(f"s_lshl_b32 s7, s7, {8*(k%4)}")
        e(f"s_or_b32 s70, s70, s7")

G = [56 + 4*i for i in range(12)]
loads = [(G[p], 1, 60 + p//4, (p % 4)*1024) for p in range(8)] + [(G[8+k], 1, 62, k*1024) for k in range(4)]
poll(loads, 70)
stamp()
for p in range(1, 8):
    e(f"v_add_f32 v{G[0]}, v{G[0]}, v{G[p]}")
    e(f"v_add_f32 v{G[0]+2}, v{G[0]+2}, v{G[p]+2}")
e(f"v_cvt_pk_bf16_f32 v48, v{G[0]}, v{G[0]+2}")
e(f"ds_write_b32 v2, v48 offset:{QB}")
e("s_waitcnt lgkmcnt(0)")
e("s_barrier")
for k in range(1, 4):
    e(f"v_add_f32 v{G[8]}, v{G[8]}, v{G[8+k]}")
    e(f"v_add_f32 v{G[8]+2}, v{G[8]+2}, v{G[8+k]+2}")
e(f"v_mov_b32 v48, v{G[8]}")
e(f"v_mov_b32 v49, v{G[8]+2}")
e("s_nop 1")
e(f"v_permlane32_swap_b32 v{G[8]}, v48")
e(f"v_permlane32_swap_b32 v{G[8]+2}, v49")
e("s_nop 1")
e(f"v_add_f32 v48, v48, v{G[8]}")
e(f"v_add_f32 v49, v49, v{G[8]+2}")
e("v_cvt_pk_bf16_f32 v48, v48, v49")
e("v_and_b32 v49, 0xffff0000, v48")
e("v_lshlrev_b32 v48, 16, v48")
e("v_lshlrev_b32 v50, 16, v14")
e("v_and_b32 v51, 0xffff0000, v14")
e("v_add_f32 v48, v48, v50")
e("v_add_f32 v49, v49, v51")
e("v_cvt_pk_bf16_f32 v48, v48, v49")
e("v_and_b32 v49, 0xffff0000, v48")
e("v_lshlrev_b32 v48, 16, v48")
import math
C1 = -2*math.sqrt(2/math.pi)*math.log2(math.e)
e(f"s_mov_b32 s66, {f2u(C1*0.044715):#x}")
e(f"v_mov_b32 v52, {f2u(C1):#x}")
for (u, t) in [(48, 50), (49, 51)]:
    e(f"v_mul_f32 v{t}, v{u}, v{u}")
for (u, t) in [(48, 50), (49, 51)]:
    e(f"v_fma_f32 v{t}, v{t}, s66, v52")
for (u, t) in [(48, 50), (49, 51)]:
    e(f"v_mul_f32 v{t}, v{t}, v{u}")
for (u, t) in [(48, 50), (49, 51)]:
    e(f"v_exp_f32 v{t}, v{t}")
e("s_nop 0")
for (u, t) in [(48, 50), (49, 51)]:
    e(f"v_add_f32 v{t}, 1.0, v{t}")
for (u, t) in [(48, 50), (49, 51)]:
    e(f"v_rcp_f32 v{t}, v{t}")
e("s_nop 0")
for (u, t) in [(48, 50), (49, 51)]:
    e(f"v_mul_f32 v{u}, v{u}, v{t}")
e("v_cvt_pk_bf16_f32 v48, v48, v48")
e("v_cvt_pk_bf16_f32 v49, v49, v49")
e("s_mov_b32 exec_hi, 0")
e(f"ds_write_b64 v6, v[48:49] offset:{HDUP}")
e("s_mov_b64 exec, -1")
e("s_lshl_b32 s58, s57, 4")
e(f"s_add_u32 s58, s58, {H2}")
e("s_lshl_b32 s59, s56, 4")
e(f"s_add_u32 s59, s59, {H2}")
e("s_waitcnt lgkmcnt(0)")
e("s_barrier")
stamp()
e("s_barrier")
e(f"ds_read_b64 v[48:49], v20 offset:{MSLOT}")
e("s_waitcnt lgkmcnt(0)")
e("v_mov_b32 v40, v48")
e("v_mov_b32 v42, v49")
e("s_mov_b64 exec, 1")
e(f"buffer_store_dwordx4 v[40:43], v1, {srd(SRD_WS)}, s58 offen sc1")
e("s_mov_b64 exec, -1")
e("v_and_b32 v7, 7, v0")
e("v_lshlrev_b32 v7, 4, v7")
poll([(G[0], 7, 59, 0)], 70)
stamp()
e(f"v_max_f32_dpp v50, v{G[0]}, v{G[0]} quad_perm:[1,0,3,2] row_mask:0xf bank_mask:0xf")
e("s_nop 1")
e(f"v_max_f32_dpp v50, v50, v50 quad_perm:[2,3,0,1] row_mask:0xf bank_mask:0xf")
e("s_nop 1")
e(f"v_max_f32_dpp v50, v50, v50 row_half_mirror row_mask:0xf bank_mask:0xf")
e(f"v_sub_f32 v51, v{G[0]}, v50")
e("v_sub_f32 v52, v48, v50")
e("v_mul_f32 v51, 0x3fb8aa3b, v51")
e("v_mul_f32 v52, 0x3fb8aa3b, v52")
e("v_exp_f32 v51, v51")
e("v_exp_f32 v52, v52")
e(f"v_mul_f32 v51, v51, v{G[0]+2}")
e("s_nop 1")
e(f"v_add_f32_dpp v51, v51, v51 quad_perm:[1,0,3,2] row_mask:0xf bank_mask:0xf")
e("s_nop 1")
e(f"v_add_f32_dpp v51, v51, v51 quad_perm:[2,3,0,1] row_mask:0xf bank_mask:0xf")
e("s_nop 1")
e(f"v_add_f32_dpp v51, v51, v51 row_half_mirror row_mask:0xf bank_mask:0xf")
e("v_rcp_f32 v51, v51")
e("s_nop 0")
e("v_mul_f32 v52, v52, v51")
e("s_lshl_b32 s58, s57, 10")
e(f"s_add_u32 s58, s58, {H3}")
e("s_lshl_b32 s60, s56, 10")
e(f"s_add_u32 s60, s60, {H3}")
e("s_add_u32 s61, s60, 4096")
e(f"s_mul_i32 s62, s{sS}, {40*1024}")
e(f"s_lshl_b32 s63, s{sH}, 4")
e("s_add_u32 s63, s63, s62")
e(f"s_add_u32 s63, s63, {H4}")
e("v_lshlrev_b32 v17, 10, v0")
e(f"s_lshl_b32 s66, s{sH}, 11")
e("s_add_u32 s66, s66, s62")
e(f"s_add_u32 s66, s66, {H4}")
e("s_barrier")
stamp()
e(f"ds_read_b64 v[48:49], v6 offset:{ACCO}")
e("s_waitcnt lgkmcnt(0)")
e("v_mul_f32 v40, v48, v52")
e("v_mul_f32 v42, v49, v52")
e(f"buffer_store_dwordx4 v[40:43], v1, {srd(SRD_WS)}, s58 offen sc1")
poll([(G[p], 1, 60 + p//4, (p % 4)*1024) for p in range(8)], 70)
stamp()
for p in range(1, 8):
    e(f"v_add_f32 v{G[0]}, v{G[0]}, v{G[p]}")
    e(f"v_add_f32 v{G[0]+2}, v{G[0]+2}, v{G[p]+2}")
e(f"v_cvt_pk_bf16_f32 v48, v{G[0]}, v{G[0]}")
e(f"v_cvt_pk_bf16_f32 v49, v{G[0]+2}, v{G[0]+2}")
e(f"ds_write_b64 v6, v[48:49] offset:{ODUP}")
e("s_waitcnt lgkmcnt(0)")
e("s_barrier")
e(f"ds_read_b64 v[48:49], v6 offset:{ACCY}")
e("s_waitcnt lgkmcnt(0)")
e("v_mov_b32 v44, v48")
e("v_mov_b32 v46, v49")
e("s_mov_b32 exec_lo, -1")
e("s_mov_b32 exec_hi, 0xff")
e(f"buffer_store_dwordx4 v[44:47], v17, {srd(SRD_WS)}, s63 offen offset:512 sc1")
e("s_mov_b64 exec, -1")
e("s_barrier")
stamp()
e(f"ds_read_b64 v[48:49], v6 offset:{ACCA}")
e("s_waitcnt lgkmcnt(0)")
e("v_mov_b32 v40, v48")
e("v_mov_b32 v42, v49")
e("s_mov_b32 exec_lo, -1")
e("s_mov_b32 exec_hi, 0xff")
e(f"buffer_store_dwordx4 v[40:43], v17, {srd(SRD_WS)}, s63 offen sc1")
e("s_mov_b64 exec, -1")
e(f"s_cmp_ge_u32 s{sH}, 20")
e("s_cbranch_scc1 L_syncend")
poll([(G[0], 1, 66, 0), (G[1], 1, 66, 1024)], 70)
stamp()
a0, a1, a2, a3 = G[0], G[0]+2, G[1], G[1]+2
e("s_mov_b32 s68, 0xaaaaaaaa")
e("s_mov_b32 s69, 0xaaaaaaaa")
e(f"v_cndmask_b32 v48, v{a0}, v{a1}, s[68:69]")
e(f"v_cndmask_b32 v49, v{a1}, v{a0}, s[68:69]")
e(f"v_cndmask_b32 v50, v{a2}, v{a3}, s[68:69]")
e(f"v_cndmask_b32 v51, v{a3}, v{a2}, s[68:69]")
e("s_mov_b32 s68, 0xcccccccc")
e("s_mov_b32 s69, 0xcccccccc")
e("v_add_f32_dpp v48, v49, v48 quad_perm:[1,0,3,2] row_mask:0xf bank_mask:0xf")
e("v_add_f32_dpp v50, v51, v50 quad_perm:[1,0,3,2] row_mask:0xf bank_mask:0xf")
e("v_cndmask_b32 v49, v50, v48, s[68:69]")
e("v_cndmask_b32 v48, v48, v50, s[68:69]")
e("s_nop 0")
e("v_add_f32_dpp v48, v49, v48 quad_perm:[2,3,0,1] row_mask:0xf bank_mask:0xf")
e("s_nop 1")
e("v_add_f32_dpp v48, v48, v48 row_ror:4 row_mask:0xf bank_mask:0xf")
e("s_nop 1")
e("v_add_f32_dpp v48, v48, v48 row_ror:8 row_mask:0xf bank_mask:0xf")
e("v_mov_b32 v49, v48")
e("s_nop 1")
e("v_permlane16_swap_b32 v48, v49")
e("s_nop 1")
e("v_add_f32 v48, v48, v49")
e("v_mov_b32 v49, v48")
e("s_nop 1")
e("v_permlane32_swap_b32 v48, v49")
e("s_nop 1")
e("v_cvt_pk_bf16_f32 v48, v48, v49")
e("v_lshlrev_b32 v15, 16, v15")
e("v_lshlrev_b32 v16, 16, v16")
e("v_and_b32 v49, 0xffff0000, v48")
e("v_lshlrev_b32 v48, 16, v48")
e("v_add_f32 v48, v15, v48")
e("v_add_f32 v49, v49, v16")
e("v_cvt_pk_bf16_f32 v48, v48, v49")
e("v_and_b32 v49, 0xffff0000, v48")
e("v_lshlrev_b32 v48, 16, v48")
e("v_add_f32 v48, v48, v49")
e("v_cvt_pk_bf16_f32 v48, v48, v48")
e("s_mov_b64 exec, 0xf")
e(f"buffer_store_short v48, v3, {srd(SRD_OUT)}, s54 offen")
e("s_cmp_lg_u32 s2, 0")
e("s_cbranch_scc1 L_syncend")
e("s_mov_b64 exec, 1")
e(f"buffer_store_dword v41, v20, {srd(SRD_WS)}, 0 offen offset:{EPOCH} sc1")
lab("L_syncend")
if A.stamps:
    e("s_mov_b64 exec, -1")
    e("s_waitcnt vmcnt(0)")
    nstamp[0] = 10
    stamp()
    e("s_getreg_b32 s71, hwreg(HW_REG_XCC_ID)")
    def setup2():
        e("s_lshl_b32 s60, s2, 7")
        e(f"s_add_u32 s60, s60, {STAMP+64}")
    flush_stamps(setup2, extra=(70, 71))
lab("L_end")
e("s_endpgm")

text = HEADER + f"; @launch grid=(256,1,1) block=(576,1,1) lds={LDS_BYTES}\n"
text += f""".amdgcn_target "amdgcn-amd-amdhsa--gfx950"
.text
.globl {NAME}
.p2align 8
.type {NAME},@function
"""
text += "\n".join(L) + "\n"
text += f""".section .rodata,"a"
.p2align 6
.amdhsa_kernel {NAME}
  .amdhsa_next_free_vgpr {NV}
  .amdhsa_next_free_sgpr 102
  .amdhsa_accum_offset {(NV+3)//4*4}
  .amdhsa_group_segment_fixed_size 0
  .amdhsa_kernarg_size 104
  .amdhsa_user_sgpr_count 2
  .amdhsa_user_sgpr_kernarg_segment_ptr 1
  .amdhsa_system_sgpr_workgroup_id_x 1
  .amdhsa_float_denorm_mode_32 3
.end_amdhsa_kernel
"""
open(A.out, "w").write(text)
```

```python
import sys, argparse, struct, math

NAME = "parallel_sum__sliding_block_cached__dense_activation_gelu__decode_kernel"
HEADER = open("parallel_sum__sliding_block_cached__dense_activation_gelu__decode.s.ref").read().split("; Override launch")[0]

ap = argparse.ArgumentParser()
ap.add_argument("--stamps", action="store_true")
ap.add_argument("--nont", action="store_true")
ap.add_argument("--nopf", action="store_true")
ap.add_argument("--wpos", default="afterBs")
ap.add_argument("--vpre", type=int, default=0)
ap.add_argument("--dual1", action="store_true")
ap.add_argument("--dual3", action="store_true")
ap.add_argument("--spoll3", action="store_true")
ap.add_argument("--h4sleep", type=int, default=0)
ap.add_argument("--n1", type=int, default=8)
ap.add_argument("--n2", type=int, default=8)
ap.add_argument("--wnt", type=int, default=1)
ap.add_argument("--nobp", action="store_true")
ap.add_argument("--dbg", action="store_true")
ap.add_argument("--out", default="/dev/stdout")
A = ap.parse_args()

L = []
def e(s=""): L.append("    " + s)
def lab(s): L.append(s + ":")
NT = "" if A.nont else " nt"
def f2u(x): return struct.unpack("<I", struct.pack("<f", x))[0]
def prio(p): e(f"s_setprio {p}")
DPPM = "row_mask:0xf bank_mask:0xf"

EPOCH = 0
H1Q = 0x1000
H1H = 0x41000
H2 = 0x81000
H3 = 0x82000
H4 = 0xC2000
LOC = 0x120000
STAMP = 0x200000
WS_BYTES = 0x300000
OPART = 0
APART = 4096
YPART = 8192
QB = 12288
ODUP = 12544
HDUP = 13056
MSLOT = 13312
LSLOT = 13316
LDS_BYTES = 13568

sWAVE, sH, sS, sTAG = 3, 4, 5, 6
pX, pK, pV, pWQ, pWO, pW1, pB1, pW2, pB2, pOUT = 8, 10, 12, 14, 16, 20, 22, 24, 26, 28
SRD_WS = 32
SRD_K, SRD_V, SRD_WO, SRD_W2 = 36, 40, 44, 48
SRD_X, SRD_WA, SRD_WB, SRD_B, SRD_OUT = 36, 40, 44, 48, 8
nstamp = [0]
STAMP_S0 = 72
def stamp():
    if A.stamps:
        k = nstamp[0]; nstamp[0] += 1
        assert STAMP_S0 + 2*k + 1 <= 99
        e(f"s_memrealtime s[{STAMP_S0+2*k}:{STAMP_S0+2*k+1}]")
def srd(r): return f"s[{r}:{r+3}]"
def r4(b): return f"v[{b}:{b+3}]"
def sp(r): return f"s[{r}:{r+1}]"
DBGMAP = {2: {0: (0, 1), 1: (0, 0), 2: (1, 0), 3: (3, 1), 4: (3, 0), 5: (4, 0), 6: (5, 0), 7: (7, 1), 8: (7, 0), 9: (9, 0), 10: (11, 0), 11: (13, 0)},
          1: {12: (2, 0), 13: (3, 0), 14: (5, 1), 15: (5, 0)}}
def flush_stamps(slot, extra=()):
    if not A.stamps: return
    e("s_waitcnt lgkmcnt(0)")
    e("s_mov_b64 exec, -1")
    e("v_mov_b32 v1, 0")
    for k in range(nstamp[0]):
        e(f"v_writelane_b32 v1, s{STAMP_S0+2*k}, {k}")
    for j, r in enumerate(extra):
        e(f"v_writelane_b32 v1, s{r}, {14+j}")
    e("s_mov_b64 exec, 0xffff")
    e("v_mbcnt_lo_u32_b32 v2, -1, 0")
    e("v_lshlrev_b32 v2, 2, v2")
    e("s_lshl_b32 s60, s2, 8")
    e(f"s_add_u32 s60, s60, {STAMP + 64*slot}")
    e(f"buffer_store_dword v1, v2, {srd(SRD_WS)}, s60 offen")
    e("s_waitcnt vmcnt(0)")
    if A.dbg and slot in DBGMAP:
        e("s_load_dwordx2 s[36:37], s[0:1], 88")
        e("s_mov_b32 s38, 256")
        e("s_mov_b32 s39, 0x20000")
        e("v_mov_b32 v1, 0")
        for lane, (k, inv) in DBGMAP[slot].items():
            if inv:
                e(f"s_not_b32 s60, s{STAMP_S0+2*k}")
                e(f"v_writelane_b32 v1, s60, {lane}")
            else:
                e(f"v_writelane_b32 v1, s{STAMP_S0+2*k}, {lane}")
        e("s_waitcnt lgkmcnt(0)")
        e("buffer_atomic_umax v1, v2, s[36:39], 0 offen sc1")
        e("s_waitcnt vmcnt(0)")

lab(NAME)
e("s_load_dwordx16 s[8:23], s[0:1], 0")
e("s_load_dwordx8 s[24:31], s[0:1], 64")
e("s_load_dwordx2 s[32:33], s[0:1], 96")
stamp()
e("v_lshrrev_b32 v1, 6, v0")
e("v_and_b32 v0, 63, v0")
e(f"v_readfirstlane_b32 s{sWAVE}, v1")
e("s_cmp_ge_u32 s2, 256")
e("s_cbranch_scc1 L_end")
e(f"s_and_b32 s{sH}, s2, 31")
e(f"s_lshr_b32 s{sS}, s2, 5")
e(f"s_mov_b32 s{SRD_WS+2}, {WS_BYTES}")
e(f"s_mov_b32 s{SRD_WS+3}, 0x20000")
e(f"s_cmp_ge_u32 s{sWAVE}, 2")
e("s_cbranch_scc1 L_stream")

prio(3)
if not A.nopf:
    e("s_getpc_b64 s[52:53]")
    lab("L_pc")
    e("v_lshlrev_b32 v1, 7, v0")
    e(f"v_min_u32 v1, L_codeend-L_pc-4, v1")
    e("global_load_dword v150, v1, s[52:53]")
e(f"s_mov_b32 s{SRD_X+2}, 1280")
e(f"s_mov_b32 s{SRD_X+3}, 0x20000")
e(f"s_mov_b32 s{SRD_WA+3}, 0x20000")
e(f"s_mov_b32 s{SRD_WB+3}, 0x20000")
e(f"s_cmp_lt_u32 s{sH}, 27")
e(f"s_cselect_b32 s57, {640*3456}, 0")
e(f"s_cmp_eq_u32 s{sWAVE}, 0")
e("s_movk_i32 s59, 3456")
e(f"s_cselect_b32 s56, 8192, s59")
e(f"s_cselect_b32 s{SRD_WA+2}, {640*8192}, s57")
e(f"s_cselect_b32 s{SRD_WB+2}, {640*8192}, 0")
e(f"s_cselect_b32 s{SRD_B+2}, 1280, s59")
e(f"s_cselect_b32 s57, 8, 7")
e(f"s_lshl_b32 s57, s{sH}, s57")
e(f"s_mul_i32 s58, s{sS}, 80")
e("s_mul_i32 s58, s58, s56")
e("s_add_u32 s58, s58, s57")
e("s_mul_i32 s59, s56, 10")
e(f"s_mul_i32 s60, s{sS}, 160")
e("v_lshrrev_b32 v8, 3, v0")
e("v_mul_lo_u32 v6, v8, s59")
e("v_and_b32 v8, 7, v0")
e("v_lshl_add_u32 v6, v8, 4, v6")
e("v_lshlrev_b32 v1, 4, v0")
e("v_lshlrev_b32 v7, 2, v0")
e("v_lshrrev_b32 v3, 4, v0")
e("v_bfe_u32 v4, v0, 1, 1")
e("v_lshl_add_u32 v8, v3, 1, v4")
e("v_mul_u32_u24 v8, 20, v8")
e(f"s_cmp_eq_u32 s{sWAVE}, 0")
e("s_waitcnt lgkmcnt(0)")
e(f"s_mov_b64 {sp(SRD_X)}, {sp(pX)}")
e(f"s_cselect_b64 {sp(SRD_WA)}, {sp(pWQ)}, {sp(pW1)}")
e(f"s_mov_b64 {sp(SRD_WB)}, {sp(pWQ)}")
e(f"buffer_load_dwordx4 v[12:15], v1, {srd(SRD_X)}, 0 offen")
e(f"buffer_load_dword v16, v7, {srd(SRD_X)}, 0 offen offset:1024")
e(f"buffer_load_dwordx4 v[18:21], v8, {srd(SRD_X)}, s60 offen")
e(f"buffer_load_dword v22, v8, {srd(SRD_X)}, s60 offen offset:16")
WR = [64 + 4*i for i in range(20)]
for rg in range(10):
    e(f"buffer_load_dwordx4 {r4(WR[2*rg])}, v6, {srd(SRD_WA)}, s58 offen{NT}")
    e(f"buffer_load_dwordx4 {r4(WR[2*rg+1])}, v6, {srd(SRD_WB)}, s58 offen offset:128{NT}")
    if rg < 9: e("s_add_u32 s58, s58, s56")
e("s_barrier")
stamp()
e(f"s_load_dword s{sTAG}, {sp(SRD_WS)}, {EPOCH}")
e(f"s_cmp_eq_u32 s{sWAVE}, 0")
e(f"s_cselect_b64 {sp(SRD_B)}, {sp(pB2)}, {sp(pB1)}")
e(f"s_mov_b32 s{SRD_B+3}, 0x20000")
e(f"s_mov_b64 {sp(SRD_OUT)}, {sp(pOUT)}")
e(f"s_mov_b32 s{SRD_OUT+2}, 1280")
e(f"s_mov_b32 s{SRD_OUT+3}, 0x20000")
e("v_bfe_u32 v2, v0, 2, 2")
e("v_and_b32 v5, 1, v0")
e("v_lshl_add_u32 v10, v2, 1, v5")
e("v_lshl_add_u32 v9, v4, 4, v10")
e("v_lshl_add_u32 v9, v3, 5, v9")
e("v_mov_b32 v147, 0")
e("s_cbranch_scc1 L_a_extra")
e("v_lshlrev_b32 v11, 1, v9")
e(f"buffer_load_ushort v23, v11, {srd(SRD_B)}, s57 offen")
e(f"buffer_load_ushort v144, v11, {srd(SRD_B)}, s57 offen offset:16")
e("s_branch L_extra_done")
lab("L_a_extra")
e(f"s_lshr_b32 s61, s{sH}, 3")
e("s_lshl_b32 s61, s61, 5")
e(f"s_and_b32 s62, s{sH}, 7")
e("s_add_u32 s61, s61, s62")
e(f"s_lshl_b32 s62, s{sH}, 1")
e("s_add_u32 s62, s62, 32")
e(f"s_cmp_lt_u32 s{sH}, 16")
e("s_cselect_b32 s61, s61, s62")
e("s_cselect_b32 s62, 32, 2")
e("s_lshl_b32 s61, s61, 1")
e("s_add_u32 s61, s61, s60")
e("v_mul_lo_u32 v11, v4, s62")
e("v_lshl_add_u32 v11, v5, 4, v11")
e(f"buffer_load_ushort v23, v11, {srd(SRD_X)}, s61 offen")
e(f"buffer_load_ushort v144, v11, {srd(SRD_B)}, s61 offen")
e("v_mov_b32 v146, 0xff800000")
e(f"ds_write_b64 v147, v[146:147] offset:{MSLOT}")
lab("L_extra_done")
e("v_lshlrev_b32 v60, 4, v5")
e("v_mov_b32 v61, 0xffff")
e("v_lshlrev_b32 v61, v60, v61")
for i in range(4): e(f"v_mov_b32 v{56+i}, 0")
e("s_nop 0")
for i in range(4):
    e(f"v_mov_b32_dpp v{56+i}, v61 quad_perm:[0,1,2,3] row_mask:0xf bank_mask:{1<<i:#x}")
e("s_mov_b32 s68, 0xcccccccc")
e("s_mov_b32 s69, 0xcccccccc")
e("s_waitcnt vmcnt(24)")
for k, r in enumerate([12, 13, 14, 15, 16]):
    e(f"v_lshlrev_b32 v{24+2*k}, 16, v{r}")
    e(f"v_and_b32 v{25+2*k}, 0xffff0000, v{r}")
e("v_readfirstlane_b32 s55, v24")
e("s_nop 1")
for k in range(10):
    e(f"v_subrev_f32 v{24+k}, s55, v{24+k}")
e("v_add_f32 v34, v24, v25")
e("v_mul_f32 v35, v24, v24")
e("v_fmac_f32 v35, v25, v25")
for k in range(2, 10):
    e(f"v_add_f32 v34, v34, v{24+k}")
    e(f"v_fmac_f32 v35, v{24+k}, v{24+k}")
for ctl in ["quad_perm:[1,0,3,2]", "quad_perm:[2,3,0,1]", "row_half_mirror", "row_mirror"]:
    e("s_nop 0")
    e(f"v_add_f32_dpp v34, v34, v34 {ctl} {DPPM}")
    e(f"v_add_f32_dpp v35, v35, v35 {ctl} {DPPM}")
for sw in ["v_permlane16_swap_b32", "v_permlane32_swap_b32"]:
    e("v_mov_b32 v36, v34")
    e("v_mov_b32 v37, v35")
    e("s_nop 1")
    e(f"{sw} v34, v36")
    e(f"{sw} v35, v37")
    e("s_nop 0")
    e("v_add_f32 v34, v34, v36")
    e("v_add_f32 v35, v35, v37")
e(f"v_mul_f32 v34, {f2u(1/640):#x}, v34")
e(f"v_mul_f32 v35, {f2u(1/640):#x}, v35")
e("v_fma_f32 v35, -v34, v34, v35")
e("v_max_f32 v35, 0, v35")
e("v_add_f32 v34, s55, v34")
e("v_cvt_pk_bf16_f32 v34, v34, v35")
e("v_and_b32 v35, 0xffff0000, v34")
e("v_lshlrev_b32 v34, 16, v34")
e(f"v_add_f32 v35, {f2u(1e-5):#x}, v35")
e("v_cvt_pk_bf16_f32 v35, v35, v35")
e("v_and_b32 v35, 0xffff0000, v35")
e("v_sqrt_f32 v35, v35")
e("s_waitcnt vmcnt(22)")
e("v_cvt_pk_bf16_f32 v35, v35, v35")
e("v_and_b32 v35, 0xffff0000, v35")
e("v_rcp_f32 v35, v35")
stamp()
vmleft = 22
for k, r in enumerate([18, 19, 20, 21, 22]):
    e(f"v_lshlrev_b32 v36, 16, v{r}")
    e(f"v_and_b32 v37, 0xffff0000, v{r}")
    e("v_sub_f32 v36, v36, v34")
    e("v_sub_f32 v37, v37, v34")
    e("v_cvt_pk_bf16_f32 v36, v36, v37")
    e("v_and_b32 v37, 0xffff0000, v36")
    e("v_lshlrev_b32 v36, 16, v36")
    e("v_mul_f32 v36, v36, v35")
    e("v_mul_f32 v37, v37, v35")
    e("v_cvt_pk_bf16_f32 v36, v36, v36")
    e("v_cvt_pk_bf16_f32 v37, v37, v37")
    bb = 24 if k % 2 == 0 else 40
    for j in range(2):
        for i in range(4):
            e(f"v_and_b32 v{bb+4*j+i}, v{36+j}, v{56+i}")
    for j in range(2):
        rg = 2*k + j
        for a in range(2):
            vmleft -= 1
            e(f"s_waitcnt vmcnt({vmleft})")
            c = "0" if rg == 0 else r4(48 + 4*a)
            e(f"v_mfma_f32_16x16x32_bf16 {r4(48+4*a)}, {r4(WR[2*rg+a])}, {r4(bb+4*j)}, {c}")
assert vmleft == 2
e("s_waitcnt lgkmcnt(0)")
e(f"s_mul_i32 s{sTAG}, s{sTAG}, 1664525")
e(f"s_add_u32 s{sTAG}, s{sTAG}, 1013904223")
e(f"s_lshl_b32 s56, s{sH}, 13")
e(f"s_lshl_b32 s57, s{sS}, 10")
e(f"s_mul_i32 s58, s{sWAVE}, {H1H-H1Q}")
e("s_add_u32 s58, s58, s56")
e(f"s_add_u32 s58, s58, {H1Q}")
e("s_add_u32 s60, s58, s57")
e(f"s_add_u32 s59, s60, {LOC}")
e(f"v_mov_b32 v41, s{sTAG}")
e(f"v_mov_b32 v43, s{sTAG}")
for r in range(4):
    e(f"v_permlane32_swap_b32 v{48+r}, v{52+r}")
e("s_nop 0")
e(f"v_add_f32_dpp v48, v52, v48 quad_perm:[2,3,0,1] {DPPM}")
e(f"v_add_f32_dpp v49, v53, v49 quad_perm:[2,3,0,1] {DPPM}")
e(f"v_add_f32_dpp v50, v50, v54 quad_perm:[2,3,0,1] {DPPM}")
e(f"v_add_f32_dpp v51, v51, v55 quad_perm:[2,3,0,1] {DPPM}")
e(f"s_cmp_eq_u32 s{sWAVE}, 0")
e("s_cselect_b32 s67, -1, 0")
e("s_mov_b32 s66, -1")
e("v_cndmask_b32 v40, v48, v50, s[68:69]")
e("v_cndmask_b32 v42, v49, v51, s[68:69]")
e("s_mov_b64 exec, s[66:67]")
if A.dual1: e(f"buffer_store_dwordx4 v[40:43], v1, {srd(SRD_WS)}, s59 offen")
e(f"buffer_store_dwordx4 v[40:43], v1, {srd(SRD_WS)}, s60 offen sc1")
if not A.nobp: e("s_barrier")
stamp()
if A.stamps: e("s_mov_b32 s70, 0")

MAXSPIN = 100000
_pl = [0]
def spoll(base_sreg, lastoff_sreg, dual):
    k = _pl[0]
    e(f"s_add_u32 s52, s{SRD_WS}, s{base_sreg}")
    e(f"s_addc_u32 s53, s{SRD_WS+1}, 0")
    off = 1020
    if lastoff_sreg is not None:
        e(f"s_add_u32 s52, s52, s{lastoff_sreg}")
        e(f"s_addc_u32 s53, s53, 0")
        off = 0
    e(f"s_mov_b32 s{sTAG+1}, s{sTAG}")
    e("s_mov_b32 s54, 0")
    lab(f"L_sp{k}")
    if dual:
        e(f"s_add_u32 s12, s52, {LOC}")
        e(f"s_addc_u32 s13, s53, 0")
        for p in range(8):
            e(f"s_load_dword s{24+p}, s[12:13], {p*1024 + off} glc")
    for p in range(8):
        e(f"s_load_dword s{16+p}, s[52:53], {p*1024 + off} glc")
    e("s_add_u32 s54, s54, 1")
    e("s_mov_b32 s63, 0")
    e(f"s_cmp_gt_u32 s54, {MAXSPIN}")
    e("s_waitcnt lgkmcnt(0)")
    e(f"s_cbranch_scc1 L_spd{k}")
    if dual:
        e(f"s_mov_b32 s63, {LOC}")
        for p in range(4):
            e(f"s_cmp_eq_u64 s[{24+2*p}:{25+2*p}], s[{sTAG}:{sTAG+1}]")
            e(f"s_cbranch_scc0 L_spg{k}")
        e(f"s_branch L_spd{k}")
        lab(f"L_spg{k}")
        e("s_mov_b32 s63, 0")
    for p in range(4):
        e(f"s_cmp_eq_u64 s[{16+2*p}:{17+2*p}], s[{sTAG}:{sTAG+1}]")
        e(f"s_cbranch_scc0 L_sp{k}")
    lab(f"L_spd{k}")
def poll(loads, execreg="-1", mid=None, first=None, retry=None, sleep=0):
    k = _pl[0]; _pl[0] += 1
    e("s_mov_b32 s7, 0")
    lab(f"L_poll{k}")
    for (r, vo, so, imm) in loads:
        e(f"buffer_load_dwordx4 v[{r}:{r+3}], v{vo}, {srd(SRD_WS)}, s{so} offen offset:{imm} sc1")
    if first:
        e("s_cmp_lg_u32 s7, 0")
        e(f"s_cbranch_scc1 L_nf{k}")
        first()
        lab(f"L_nf{k}")
    e("s_add_u32 s7, s7, 1")
    for j, (r, vo, so, imm) in enumerate(loads):
        e(f"s_waitcnt vmcnt({len(loads)-1-j})")
        if j == 0 and mid: mid()
        e(f"v_cmpx_eq_u32 vcc, s{sTAG}, v{r+1}")
        e(f"v_cmpx_eq_u32 vcc, s{sTAG}, v{r+3}")
    e("s_nop 1")
    e(f"s_cmp_eq_u64 exec, {execreg}")
    e(f"s_mov_b64 exec, {execreg}")
    e(f"s_cbranch_scc1 L_polldone{k}")
    if retry: retry()
    if sleep: e(f"s_sleep {sleep}")
    e(f"s_cmp_lt_u32 s7, {MAXSPIN}")
    e(f"s_cbranch_scc1 L_poll{k}")
    e("s_endpgm")
    lab(f"L_polldone{k}")
    if A.stamps:
        e(f"s_lshl_b32 s7, s7, {8*(k%4)}")
        e(f"s_or_b32 s70, s70, s7")

G = [64 + 4*i for i in range(12)]
e(f"s_lshl_b32 s55, s{sWAVE}, 9")
e("s_sub_u32 s55, 1020, s55")
spoll(58, 55, A.dual1)
e("s_add_u32 s58, s58, s63")
e("s_add_u32 s59, s58, 4096")
stamp()
if A.stamps:
    e("s_lshr_b32 s71, s63, 17")
poll([(G[p], 1, 58 + p//4, (p % 4)*1024) for p in range(8)], "s[66:67]", first=(lambda: e("s_barrier")))
stamp()
for p in range(1, 8):
    e(f"v_add_f32 v{G[0]}, v{G[0]}, v{G[p]}")
    e(f"v_add_f32 v{G[0]+2}, v{G[0]+2}, v{G[p]+2}")
e(f"v_cvt_pk_bf16_f32 v48, v{G[0]}, v{G[0]+2}")
e(f"s_cmp_eq_u32 s{sWAVE}, 0")
e("s_cbranch_scc1 L_a")
e("v_and_b32 v49, 0xffff0000, v48")
e("v_lshlrev_b32 v48, 16, v48")
e("v_lshlrev_b32 v50, 16, v23")
e("v_lshlrev_b32 v51, 16, v144")
e("v_add_f32 v48, v48, v50")
e("v_add_f32 v49, v49, v51")
e("v_cvt_pk_bf16_f32 v48, v48, v49")
e("v_and_b32 v49, 0xffff0000, v48")
e("v_lshlrev_b32 v48, 16, v48")
C1 = -2*math.sqrt(2/math.pi)*math.log2(math.e)
e(f"s_mov_b32 s62, {f2u(C1*0.044715):#x}")
e(f"v_mov_b32 v52, {f2u(C1):#x}")
P2 = [(48, 50), (49, 51)]
for (u, t) in P2: e(f"v_mul_f32 v{t}, v{u}, v{u}")
for (u, t) in P2: e(f"v_fma_f32 v{t}, v{t}, s62, v52")
for (u, t) in P2: e(f"v_mul_f32 v{t}, v{t}, v{u}")
for (u, t) in P2: e(f"v_exp_f32 v{t}, v{t}")
e("v_lshlrev_b32 v9, 2, v9")
for (u, t) in P2: e(f"v_add_f32 v{t}, 1.0, v{t}")
for (u, t) in P2: e(f"v_rcp_f32 v{t}, v{t}")
e("s_nop 0")
for (u, t) in P2: e(f"v_mul_f32 v{u}, v{u}, v{t}")
e("v_cvt_pk_bf16_f32 v48, v48, v48")
e("v_cvt_pk_bf16_f32 v49, v49, v49")
e(f"v_add_u32 v9, {HDUP}, v9")
e("ds_write2_b32 v9, v48, v49 offset0:0 offset1:8")
e("s_waitcnt lgkmcnt(0)")
if A.stamps:
    stamp()
    flush_stamps(3, extra=(70, 71))
e("s_endpgm")
lab("L_a")
nstamp[0] = 6
e("v_lshlrev_b32 v8, 1, v9")
e(f"ds_write_b16 v8, v48 offset:{QB}")
e(f"ds_write_b16_d16_hi v8, v48 offset:{QB+16}")
e("s_waitcnt lgkmcnt(0)")
e("s_barrier")
e("v_lshl_add_u32 v8, v3, 3, v10")
e("v_lshl_add_u32 v12, v8, 1, v4")
e("v_lshlrev_b32 v13, 3, v12")
e("v_add_u32 v14, 32, v10")
e("v_cmp_gt_u32 vcc, 32, v0")
e("v_and_b32 v15, 7, v0")
e("v_lshlrev_b32 v15, 4, v15")
e("v_cndmask_b32 v12, v14, v12, vcc")
e("v_lshlrev_b32 v12, 10, v12")
e("v_lshlrev_b32 v14, 2, v9")
e(f"v_add_u32 v14, {ODUP}, v14")
e(f"s_add_u32 s58, s56, {H3}")
e("s_add_u32 s60, s58, s57")
e("s_lshr_b32 s62, s56, 6")
e(f"s_add_u32 s62, s62, {H2}")
e("s_lshr_b32 s55, s57, 6")
e("s_add_u32 s55, s55, s62")
if A.dual3:
    e(f"s_add_u32 s20, s60, {LOC}")
    e(f"s_add_u32 s21, s55, {LOC}")
    e("s_add_u32 s58, s58, s63")
    e("s_add_u32 s62, s62, s63")
e("s_add_u32 s59, s58, 4096")
e(f"s_mul_i32 s64, s{sS}, 40960")
e(f"s_add_u32 s64, s64, {H4}")
e(f"s_lshl_b32 s65, s{sH}, 11")
e("s_add_u32 s65, s65, s64")
e(f"s_lshl_b32 s66, s{sH}, 4")
e("s_add_u32 s64, s64, s66")
e("s_mov_b32 s66, -1")
e("s_mov_b32 s67, 0x3333")
e(f"v_mov_b32 v45, s{sTAG}")
e(f"v_mov_b32 v47, s{sTAG}")
e("s_barrier")
stamp()
e("s_barrier")
stamp()
def sum8(off, d0, d1):
    for w in range(8):
        e(f"ds_read_b64 v[{24+2*w}:{25+2*w}], v13 offset:{off + w*512}")
    e("s_waitcnt lgkmcnt(6)")
    e("v_pk_add_f32 v[24:25], v[24:25], v[26:27]")
    e("s_waitcnt lgkmcnt(4)")
    e("v_pk_add_f32 v[28:29], v[28:29], v[30:31]")
    e("s_waitcnt lgkmcnt(2)")
    e("v_pk_add_f32 v[32:33], v[32:33], v[34:35]")
    e("v_pk_add_f32 v[24:25], v[24:25], v[28:29]")
    e("s_waitcnt lgkmcnt(0)")
    e("v_pk_add_f32 v[36:37], v[36:37], v[38:39]")
    e("v_pk_add_f32 v[24:25], v[24:25], v[32:33]")
    e(f"v_add_f32 v{d0}, v24, v36")
    e(f"v_add_f32 v{d1}, v25, v37")
e(f"ds_read_b64 v[48:49], v147 offset:{MSLOT}")
sum8(OPART, 40, 42)
e("v_mov_b32 v44, v48")
e("v_mov_b32 v46, v49")
if A.dual3:
    e(f"buffer_store_dwordx4 v[40:43], v1, {srd(SRD_WS)}, s20 offen")
    e("s_mov_b64 exec, 1")
    e(f"buffer_store_dwordx4 v[44:47], v1, {srd(SRD_WS)}, s21 offen")
    e("s_mov_b64 exec, -1")
e(f"buffer_store_dwordx4 v[40:43], v1, {srd(SRD_WS)}, s60 offen sc1")
e("s_mov_b64 exec, 1")
e(f"buffer_store_dwordx4 v[44:47], v1, {srd(SRD_WS)}, s55 offen sc1")
e("s_mov_b64 exec, -1")
stamp()
ST = G[8]
def weights():
    e(f"v_max_f32_dpp v50, v{ST}, v{ST} quad_perm:[1,0,3,2] {DPPM}")
    e("s_nop 1")
    e(f"v_max_f32_dpp v50, v50, v50 quad_perm:[2,3,0,1] {DPPM}")
    e("s_nop 1")
    e(f"v_max_f32_dpp v50, v50, v50 row_half_mirror {DPPM}")
    e(f"v_sub_f32 v51, v{ST}, v50")
    e("v_mul_f32 v51, 0x3fb8aa3b, v51")
    e("v_exp_f32 v51, v51")
    e("s_nop 0")
    e(f"v_mul_f32 v52, v51, v{ST+2}")
    e("s_nop 1")
    e(f"v_add_f32_dpp v52, v52, v52 quad_perm:[1,0,3,2] {DPPM}")
    e("s_nop 1")
    e(f"v_add_f32_dpp v52, v52, v52 quad_perm:[2,3,0,1] {DPPM}")
    e("s_nop 1")
    e(f"v_add_f32_dpp v52, v52, v52 row_half_mirror {DPPM}")
    e("v_rcp_f32 v52, v52")
    e("s_nop 0")
    e("v_mul_f32 v51, v51, v52")
def retry3():
    e("s_cmp_eq_u32 s7, 16")
    e("s_cselect_b32 s22, s63, 0")
    e("s_sub_u32 s58, s58, s22")
    e("s_sub_u32 s59, s59, s22")
    e("s_sub_u32 s62, s62, s22")
if A.spoll3:
    assert not A.dual3
    spoll(58, None, False)
poll([(ST, 15, 62, 0)] + [(G[p], 1, 58 + p//4, (p % 4)*1024) for p in range(8)], "-1", mid=weights, retry=retry3 if A.dual3 else None)
stamp()
e("s_nop 1")
e(f"v_mul_f32_dpp v48, v51, v{G[0]} row_newbcast:0 {DPPM}")
e(f"v_mul_f32_dpp v49, v51, v{G[0]+2} row_newbcast:0 {DPPM}")
for p in range(1, 8):
    e(f"v_fmac_f32_dpp v48, v51, v{G[p]} row_newbcast:{p} {DPPM}")
    e(f"v_fmac_f32_dpp v49, v51, v{G[p]+2} row_newbcast:{p} {DPPM}")
e("v_cvt_pk_bf16_f32 v48, v48, v48")
e("v_cvt_pk_bf16_f32 v49, v49, v49")
e("ds_write2_b32 v14, v48, v49 offset0:0 offset1:8")
e("s_waitcnt lgkmcnt(0)")
e("s_barrier")
sum8(YPART, 44, 46)
e("s_mov_b64 exec, s[66:67]")
e(f"buffer_store_dwordx4 v[44:47], v12, {srd(SRD_WS)}, s64 offen offset:512 sc1")
e("s_mov_b64 exec, -1")
e("s_barrier")
stamp()
sum8(APART, 40, 42)
e("s_mov_b64 exec, s[66:67]")
e(f"buffer_store_dwordx4 v[40:43], v12, {srd(SRD_WS)}, s64 offen sc1")
e("s_mov_b64 exec, -1")
stamp()
e(f"s_cmp_ge_u32 s{sH}, 20")
e("s_cbranch_scc1 L_aend")
e("s_mov_b32 s66, 0xaaaaaaaa")
e("s_mov_b32 s67, 0xaaaaaaaa")
e("v_lshlrev_b32 v23, 16, v23")
e("v_lshlrev_b32 v144, 16, v144")
poll([(G[0], 1, 65, 0), (G[1], 1, 65, 1024)], sleep=A.h4sleep)
stamp()
a0, a1, a2, a3 = G[0], G[0]+2, G[1], G[1]+2
e(f"v_cndmask_b32 v48, v{a0}, v{a1}, s[66:67]")
e(f"v_cndmask_b32 v49, v{a1}, v{a0}, s[66:67]")
e(f"v_cndmask_b32 v51, v{a3}, v{a2}, s[66:67]")
e(f"v_cndmask_b32 v50, v{a2}, v{a3}, s[66:67]")
e(f"v_add_f32_dpp v48, v49, v48 quad_perm:[1,0,3,2] {DPPM}")
e(f"v_add_f32_dpp v50, v51, v50 quad_perm:[1,0,3,2] {DPPM}")
e("v_cndmask_b32 v49, v50, v48, s[68:69]")
e("v_cndmask_b32 v48, v48, v50, s[68:69]")
e("s_nop 0")
e(f"v_add_f32_dpp v48, v49, v48 quad_perm:[2,3,0,1] {DPPM}")
e("s_nop 1")
e(f"v_add_f32_dpp v48, v48, v48 row_ror:4 {DPPM}")
e("s_nop 1")
e(f"v_add_f32_dpp v48, v48, v48 row_ror:8 {DPPM}")
e("v_mov_b32 v49, v48")
e("s_nop 1")
e("v_permlane16_swap_b32 v48, v49")
e("s_nop 0")
e("v_add_f32 v48, v48, v49")
e("v_mov_b32 v49, v48")
e("s_nop 1")
e("v_permlane32_swap_b32 v48, v49")
e("s_nop 0")
e("v_cvt_pk_bf16_f32 v48, v48, v49")
e("v_and_b32 v49, 0xffff0000, v48")
e("v_lshlrev_b32 v48, 16, v48")
e("v_add_f32 v48, v23, v48")
e("v_add_f32 v49, v49, v144")
e("v_cvt_pk_bf16_f32 v48, v48, v49")
e("v_and_b32 v49, 0xffff0000, v48")
e("v_lshlrev_b32 v48, 16, v48")
e("v_add_f32 v48, v48, v49")
e("v_cvt_pk_bf16_f32 v48, v48, v48")
e("s_mov_b64 exec, 0xf")
e(f"buffer_store_short v48, v11, {srd(SRD_OUT)}, s61 offen")
e("s_cmp_lg_u32 s2, 0")
e("s_cbranch_scc1 L_aend")
e("s_mov_b64 exec, 1")
e(f"buffer_store_dword v41, v147, {srd(SRD_WS)}, 0 offen offset:{EPOCH} sc1")
lab("L_aend")
if A.stamps:
    e("s_waitcnt vmcnt(0)")
    nstamp[0] = 13
    stamp()
    flush_stamps(2, extra=(70, 71))
lab("L_end")
e("s_endpgm")

lab("L_stream")
nstamp[0] = 1
prio(2)
vL = 0
vOK, vOV, vOW = 1, 2, 3
vM = [4, 5, 6, 7]
vT = [8, 9, 10, 11, 12, 13]
vAP, vAQ, vAW, vAH = 14, 15, 16, 17
vK = [20 + 4*i for i in range(8)]
vV = [52 + 4*i for i in range(8)]
vW = [84 + 4*i for i in range(6)]
vQB = [108 + 4*i for i in range(4)]
vB = [124, 128, 132]
vD = [136, 140, 144, 148]
NV = 152
e(f"s_sub_u32 s{sWAVE}, s{sWAVE}, 2")
e(f"s_lshl_b32 s58, s{sH}, 21")
e(f"s_lshl_b32 s53, s{sS}, 16")
e("s_add_u32 s58, s58, s53")
e(f"s_lshl_b32 s53, s{sWAVE}, 13")
e("s_add_u32 s58, s58, s53")
e(f"s_add_u32 s58, s58, {6144*256}")
e("s_add_u32 s59, s58, 4096")
e(f"v_bfe_u32 v{vT[0]}, v{vL}, 2, 2")
e(f"v_lshrrev_b32 v{vT[1]}, 4, v{vL}")
e(f"v_and_b32 v{vT[2]}, 3, v{vL}")
e(f"v_lshlrev_b32 v{vOK}, 8, v{vT[0]}")
e(f"v_lshl_add_u32 v{vOK}, v{vT[1]}, 6, v{vOK}")
e(f"v_lshl_add_u32 v{vOK}, v{vT[2]}, 4, v{vOK}")
e(f"v_lshlrev_b32 v{vOV}, 4, v{vL}")
e(f"s_mov_b32 s{SRD_K+2}, 0x4000000")
e(f"s_mov_b32 s{SRD_K+3}, 0x20000")
e(f"s_mov_b32 s{SRD_V+2}, 0x4000000")
e(f"s_mov_b32 s{SRD_V+3}, 0x20000")
e("s_waitcnt lgkmcnt(0)")
e(f"s_mov_b64 {sp(SRD_K)}, {sp(pK)}")
e(f"s_mov_b64 {sp(SRD_V)}, {sp(pV)}")
vm = []
def load_k():
    for t in range(8):
        e(f"buffer_load_dwordx4 {r4(vK[t])}, v{vOK}, {srd(SRD_K)}, s{58 + t//4} offen offset:{(t%4)*1024}{NT}")
        vm.append(f"k{t}")
def load_v(lo, hi):
    for t in range(lo, hi):
        e(f"buffer_load_dwordx4 {r4(vV[t])}, v{vOV}, {srd(SRD_V)}, s{58 + t//4} offen offset:{(t%4)*1024}{NT}")
        vm.append(f"v{t}")
def load_w():
    prio(0)
    for u in range(2):
        e(f"buffer_load_dwordx4 {r4(vW[4+u])}, v{vOW}, {srd(SRD_W2)}, s{66+u} offen{NT if A.wnt else ''}")
        vm.append(f"y{u}")
    for u in range(4):
        e(f"buffer_load_dwordx4 {r4(vW[u])}, v{vOW}, {srd(SRD_WO)}, s{62+u} offen{NT if A.wnt else ''}")
        vm.append(f"a{u}")
    prio(2)
def wait_vm(name):
    n = len(vm) - 1 - vm.index(name)
    e(f"s_waitcnt vmcnt({n})")
def load_kv(lo, hi):
    for j in range(lo, hi):
        if j == 8: prio(1)
        t = j % 8
        if j < 8:
            e(f"buffer_load_dwordx4 {r4(vK[t])}, v{vOK}, {srd(SRD_K)}, s{58 + t//4} offen offset:{(t%4)*1024}{NT}")
            vm.append(f"k{t}")
        else:
            e(f"buffer_load_dwordx4 {r4(vV[t])}, v{vOV}, {srd(SRD_V)}, s{58 + t//4} offen offset:{(t%4)*1024}{NT}")
            vm.append(f"v{t}")
e("s_barrier")
load_kv(0, A.n1)
stamp()
e(f"s_mov_b64 {sp(SRD_WO)}, {sp(pWO)}")
e(f"s_mov_b64 {sp(SRD_W2)}, {sp(pW2)}")
e(f"s_mov_b32 s{SRD_WO+2}, {4096*640*2}")
e(f"s_mov_b32 s{SRD_WO+3}, 0x20000")
e(f"s_mov_b32 s{SRD_W2+2}, {1728*640*2}")
e(f"s_mov_b32 s{SRD_W2+3}, 0x20000")
e(f"s_lshl_b32 s52, s{sH}, 7")
e(f"s_lshl_b32 s53, s{sWAVE}, 4")
e("s_add_u32 s52, s52, s53")
e("s_mul_i32 s62, s52, 1280")
e(f"s_mul_i32 s53, s{sS}, 160")
e("s_add_u32 s62, s62, s53")
e("s_add_u32 s63, s62, 5120")
e("s_add_u32 s64, s62, 10240")
e("s_add_u32 s65, s62, 15360")
e("s_lshr_b32 s52, s52, 1")
e("s_mul_i32 s66, s52, 1280")
e("s_add_u32 s66, s66, s53")
e("s_add_u32 s67, s66, 5120")
e(f"v_and_b32 v{vT[3]}, 15, v{vL}")
e(f"v_mul_u32_u24 v{vOW}, 1280, v{vT[1]}")
e(f"v_lshl_add_u32 v{vOW}, v{vT[3]}, 4, v{vOW}")
e(f"v_cmp_lt_u32 vcc, 9, v{vT[3]}")
e(f"v_bfrev_b32 v{vT[4]}, 2")
e(f"v_and_b32 v{vT[3]}, 1, v{vL}")
e(f"v_cndmask_b32 v{vOW}, v{vOW}, v{vT[4]}, vcc")
e(f"v_lshlrev_b32 v{vT[4]}, 4, v{vT[3]}")
e(f"v_mov_b32 v{vT[5]}, 0xffff")
e(f"v_lshlrev_b32 v{vT[5]}, v{vT[4]}, v{vT[5]}")
for i in range(4):
    e(f"v_mov_b32 v{vM[i]}, 0")
e("s_nop 0")
for i in range(4):
    e(f"v_mov_b32_dpp v{vM[i]}, v{vT[5]} quad_perm:[0,1,2,3] row_mask:0xf bank_mask:{1<<i:#x}")
e(f"v_lshl_add_u32 v{vAP}, v{vT[0]}, 1, v{vT[3]}")
e(f"v_lshl_add_u32 v{vAP}, v{vT[1]}, 3, v{vAP}")
e(f"s_lshl_b32 s53, s{sWAVE}, 5")
e(f"v_add_lshl_u32 v{vAP}, v{vAP}, s53, 4")
e(f"v_bfe_u32 v{vT[4]}, v{vL}, 1, 1")
e(f"v_lshl_add_u32 v{vAW}, v{vT[4]}, 2, v{vT[1]}")
e(f"s_lshl_b32 s53, s{sWAVE}, 3")
e(f"v_add_lshl_u32 v{vAH}, v{vAW}, s53, 2")
e(f"s_lshl_b32 s53, s{sWAVE}, 4")
e(f"v_add_lshl_u32 v{vAW}, v{vAW}, s53, 2")
e(f"v_lshl_add_u32 v{vAQ}, v{vT[1]}, 2, v{vT[2]}")
e(f"v_lshlrev_b32 v{vAQ}, 4, v{vAQ}")
for t in range(4):
    for r in range(4):
        e(f"v_mov_b32 v{vQB[t]+r}, 0")
e(f"v_mov_b32 v{vT[2]}, 0")
e("s_mov_b32 s68, 0xcccccccc")
e("s_mov_b32 s69, 0xcccccccc")
e("s_mov_b32 s70, 0x33333333")
e("s_mov_b32 s71, 0x33333333")
e("s_mov_b32 s56, 0x00010001")
e("s_mov_b32 s57, 0x00010001")
if not A.nobp: e("s_barrier")
load_kv(A.n1, A.n2)
e("s_barrier")
load_kv(A.n2, 16)
prio(2)
stamp()
e("s_barrier")
for t in range(4):
    m = 0x000f000f << (4*t)
    e(f"s_mov_b32 exec_lo, {m:#x}")
    e(f"s_mov_b32 exec_hi, {m:#x}")
    e(f"ds_read_b128 {r4(vQB[t])}, v{vAQ} offset:{QB}")
e("s_mov_b64 exec, -1")
e(f"ds_read_b32 v{vT[5]}, v{vAH} offset:{HDUP}")
if A.wpos == "afterBq": load_w()
e("s_waitcnt lgkmcnt(0)")
for t in range(8):
    wait_vm(f"k{t}")
    d = vD[t//4]
    c = "0" if t % 4 == 0 else r4(d)
    e(f"v_mfma_f32_16x16x32_bf16 {r4(d)}, {r4(vK[t])}, {r4(vQB[t%4])}, {c}")
stamp()
for i in range(4):
    e(f"v_and_b32 v{vB[2]+i}, v{vT[5]}, v{vM[i]}")
e("s_nop 3")
for k in range(2):
    e(f"v_mov_b32_dpp v{vT[k]}, v{vD[k]} quad_perm:[0,0,0,0] {DPPM}")
for c in range(1, 4):
    for k in range(2):
        e(f"v_add_f32_dpp v{vT[k]}, v{vD[k]+c}, v{vT[k]} quad_perm:[{c},{c},{c},{c}] {DPPM}")
e(f"v_cndmask_b32 v{vT[0]}, v{vT[0]}, v{vT[1]}, s[68:69]")
e(f"v_cvt_pk_bf16_f32 v{vT[0]}, v{vT[0]}, v{vT[0]}")
e(f"v_and_b32 v{vT[0]}, 0xffff0000, v{vT[0]}")
e(f"v_mul_f32 v{vT[0]}, 0x3db504f3, v{vT[0]}")
e(f"v_cvt_pk_bf16_f32 v{vT[0]}, v{vT[0]}, v{vT[0]}")
e(f"v_and_b32 v{vT[0]}, 0xffff0000, v{vT[0]}")
e("s_nop 1")
e(f"v_max_f32_dpp v{vT[1]}, v{vT[0]}, v{vT[0]} quad_perm:[2,3,0,1] {DPPM}")
e("s_nop 1")
e(f"v_max_f32_dpp v{vT[1]}, v{vT[1]}, v{vT[1]} row_ror:4 {DPPM}")
e("s_nop 1")
e(f"v_max_f32_dpp v{vT[1]}, v{vT[1]}, v{vT[1]} row_ror:8 {DPPM}")
e("s_mov_b64 exec, s[56:57]")
e(f"ds_max_f32 v{vT[2]}, v{vT[1]} offset:{MSLOT}")
e("s_mov_b64 exec, -1")
e("s_waitcnt lgkmcnt(0)")
e("s_barrier")
e(f"ds_read_b32 v{vT[1]}, v{vT[2]} offset:{MSLOT}")
if A.wpos == "afterBs": load_w()
e("s_waitcnt lgkmcnt(0)")
e(f"v_sub_f32 v{vT[0]}, v{vT[0]}, v{vT[1]}")
e(f"v_mul_f32 v{vT[0]}, 0x3fb8aa3b, v{vT[0]}")
e(f"v_exp_f32 v{vT[0]}, v{vT[0]}")
e("s_nop 1")
e(f"v_add_f32_dpp v{vT[1]}, v{vT[0]}, v{vT[0]} quad_perm:[2,3,0,1] {DPPM}")
e(f"v_cvt_pk_bf16_f32 v{vT[3]}, v{vT[0]}, v{vT[0]}")
e("s_nop 0")
e(f"v_add_f32_dpp v{vT[1]}, v{vT[1]}, v{vT[1]} row_ror:4 {DPPM}")
def pvb(t, i):
    n = 4*((i - t) & 3)
    if n == 0: e(f"v_and_b32 v{vK[t]+i}, v{vT[3]}, v{vM[i]}")
    else: e(f"v_and_b32_dpp v{vK[t]+i}, v{vT[3]}, v{vM[i]} row_ror:{n} {DPPM}")
pvb(0, 0); pvb(0, 1)
e(f"v_add_f32_dpp v{vT[1]}, v{vT[1]}, v{vT[1]} row_ror:8 {DPPM}")
e("s_mov_b64 exec, s[56:57]")
e(f"ds_add_f32 v{vT[2]}, v{vT[1]} offset:{LSLOT}")
e("s_mov_b64 exec, -1")
for t in range(4):
    for i in range(4):
        if (t, i) not in [(0, 0), (0, 1)]: pvb(t, i)
for u in range(8):
    wait_vm(f"v{u}")
    d = vD[u//4]
    c = "0" if u % 4 == 0 else r4(d)
    e(f"v_mfma_f32_16x16x32_bf16 {r4(d)}, {r4(vV[u])}, {r4(vK[u%4])}, {c}")
stamp()
def merge_write(d0, d1, off):
    e("s_nop 7")
    for r in range(4):
        e(f"v_add_f32_dpp v{d0+r}, v{d1+r}, v{d0+r} quad_perm:[2,3,0,1] {DPPM}")
    e("s_mov_b64 exec, s[70:71]")
    e(f"ds_write_b128 v{vAP}, {r4(d0)} offset:{off}")
    e("s_mov_b64 exec, -1")
merge_write(vD[0], vD[1], OPART)
e("s_waitcnt lgkmcnt(0)")
e("s_barrier")
for u in range(2):
    wait_vm(f"y{u}")
    e(f"v_mfma_f32_16x16x32_bf16 {r4(vD[2+u])}, {r4(vW[4+u])}, {r4(vB[2])}, 0")
merge_write(vD[2], vD[3], YPART)
e("s_waitcnt vmcnt(0) lgkmcnt(0)")
stamp()
e("s_barrier")
e(f"ds_read_b32 v{vT[0]}, v{vAW} offset:{ODUP}")
e(f"ds_read_b32 v{vT[1]}, v{vAW} offset:{ODUP+32}")
for k in range(2):
    e(f"s_waitcnt lgkmcnt({1-k})")
    for i in range(4):
        e(f"v_and_b32 v{vB[k]+i}, v{vT[k]}, v{vM[i]}")
for u in range(4):
    d = vD[u % 2]
    c = "0" if u < 2 else r4(d)
    e(f"v_mfma_f32_16x16x32_bf16 {r4(d)}, {r4(vW[u])}, {r4(vB[u//2])}, {c}")
merge_write(vD[0], vD[1], APART)
e("s_waitcnt lgkmcnt(0)")
e("s_barrier")
if A.stamps:
    stamp()
    e(f"s_cmp_eq_u32 s{sWAVE}, 0")
    e("s_cbranch_scc1 L_st0")
    e(f"s_cmp_lg_u32 s{sWAVE}, 7")
    e("s_cbranch_scc1 L_end2")
    flush_stamps(1)
    e("s_endpgm")
    lab("L_st0")
    flush_stamps(0)
    lab("L_end2")
e("s_endpgm")
lab("L_codeend")

text = HEADER + f"; @launch grid=(256,1,1) block=(640,1,1) lds={LDS_BYTES}\n"
text += f""".amdgcn_target "amdgcn-amd-amdhsa--gfx950"
.text
.globl {NAME}
.p2align 8
.type {NAME},@function
"""
text += "\n".join(L) + "\n"
text += f""".section .rodata,"a"
.p2align 6
.amdhsa_kernel {NAME}
  .amdhsa_next_free_vgpr {NV}
  .amdhsa_next_free_sgpr 102
  .amdhsa_accum_offset {(NV+3)//4*4}
  .amdhsa_group_segment_fixed_size 0
  .amdhsa_kernarg_size 104
  .amdhsa_user_sgpr_count 2
  .amdhsa_user_sgpr_kernarg_segment_ptr 1
  .amdhsa_system_sgpr_workgroup_id_x 1
  .amdhsa_float_denorm_mode_32 3
.end_amdhsa_kernel
"""
open(A.out, "w").write(text)
```

```python
import sys, argparse, struct, math

NAME = "parallel_sum__sliding_block_cached__dense_activation_gelu__decode_kernel"
HEADER = open("parallel_sum__sliding_block_cached__dense_activation_gelu__decode.s.ref").read().split("; Override launch")[0]

ap = argparse.ArgumentParser()
ap.add_argument("--stamps", action="store_true")
ap.add_argument("--nont", action="store_true")
ap.add_argument("--nopf", action="store_true")
ap.add_argument("--wpos", default="afterBs")
ap.add_argument("--vpre", type=int, default=0)
ap.add_argument("--dual1", action="store_true")
ap.add_argument("--dual3", action="store_true")
ap.add_argument("--spoll3", action="store_true")
ap.add_argument("--h4sleep", type=int, default=0)
ap.add_argument("--n1", type=int, default=8)
ap.add_argument("--n2", type=int, default=8)
ap.add_argument("--wnt", type=int, default=1)
ap.add_argument("--nobp", action="store_true")
ap.add_argument("--dbg", action="store_true")
ap.add_argument("--amp", type=int, default=-1)
ap.add_argument("--out", default="/dev/stdout")
A = ap.parse_args()

L = []
def e(s=""): L.append("    " + s)
def lab(s): L.append(s + ":")
NT = "" if A.nont else " nt"
def f2u(x): return struct.unpack("<I", struct.pack("<f", x))[0]
def prio(p): e(f"s_setprio {p}")
DPPM = "row_mask:0xf bank_mask:0xf"

EPOCH = 0
H1Q = 0x1000
H1H = 0x41000
H2 = 0x81000
H3 = 0x82000
H4 = 0xC2000
LOC = 0x120000
STAMP = 0x200000
WS_BYTES = 0x300000
OPART = 0
APART = 4096
YPART = 8192
QB = 12288
ODUP = 12544
HDUP = 13056
MSLOT = 13312
LSLOT = 13316
LDS_BYTES = 13568

sWAVE, sH, sS, sTAG = 3, 4, 5, 6
pX, pK, pV, pWQ, pWO, pW1, pB1, pW2, pB2, pOUT = 8, 10, 12, 14, 16, 20, 22, 24, 26, 28
SRD_WS = 32
SRD_K, SRD_V, SRD_WO, SRD_W2 = 36, 40, 44, 48
SRD_X, SRD_WA, SRD_WB, SRD_B, SRD_OUT = 36, 40, 44, 48, 8
nstamp = [0]
STAMP_S0 = 72
inA = [True]
def stamp():
    if A.amp >= 0:
        k = nstamp[0]; nstamp[0] += 1
        if inA[0] and k in (0, A.amp): e(f"s_memrealtime s[{STAMP_S0+2*k}:{STAMP_S0+2*k+1}]")
        return
    if A.stamps:
        k = nstamp[0]; nstamp[0] += 1
        assert STAMP_S0 + 2*k + 1 <= 99
        e(f"s_memrealtime s[{STAMP_S0+2*k}:{STAMP_S0+2*k+1}]")
def srd(r): return f"s[{r}:{r+3}]"
def r4(b): return f"v[{b}:{b+3}]"
def sp(r): return f"s[{r}:{r+1}]"
DBGMAP = {2: {0: (0, 1), 1: (0, 0), 2: (1, 0), 3: (3, 1), 4: (3, 0), 5: (4, 0), 6: (5, 0), 7: (7, 1), 8: (7, 0), 9: (9, 0), 10: (11, 0), 11: (13, 0)},
          1: {12: (2, 0), 13: (3, 0), 14: (5, 1), 15: (5, 0)}}
def flush_stamps(slot, extra=()):
    if not A.stamps: return
    e("s_waitcnt lgkmcnt(0)")
    e("s_mov_b64 exec, -1")
    e("v_mov_b32 v1, 0")
    for k in range(nstamp[0]):
        e(f"v_writelane_b32 v1, s{STAMP_S0+2*k}, {k}")
    for j, r in enumerate(extra):
        e(f"v_writelane_b32 v1, s{r}, {14+j}")
    e("s_mov_b64 exec, 0xffff")
    e("v_mbcnt_lo_u32_b32 v2, -1, 0")
    e("v_lshlrev_b32 v2, 2, v2")
    e("s_lshl_b32 s60, s2, 8")
    e(f"s_add_u32 s60, s60, {STAMP + 64*slot}")
    e(f"buffer_store_dword v1, v2, {srd(SRD_WS)}, s60 offen")
    e("s_waitcnt vmcnt(0)")
    if A.dbg and slot in DBGMAP:
        e("s_load_dwordx2 s[36:37], s[0:1], 88")
        e("s_mov_b32 s38, 256")
        e("s_mov_b32 s39, 0x20000")
        e("v_mov_b32 v1, 0")
        for lane, (k, inv) in DBGMAP[slot].items():
            if inv:
                e(f"s_not_b32 s60, s{STAMP_S0+2*k}")
                e(f"v_writelane_b32 v1, s60, {lane}")
            else:
                e(f"v_writelane_b32 v1, s{STAMP_S0+2*k}, {lane}")
        e("s_waitcnt lgkmcnt(0)")
        e("buffer_atomic_umax v1, v2, s[36:39], 0 offen sc1")
        e("s_waitcnt vmcnt(0)")

lab(NAME)
e("s_load_dwordx16 s[8:23], s[0:1], 0")
e("s_load_dwordx8 s[24:31], s[0:1], 64")
e("s_load_dwordx2 s[32:33], s[0:1], 96")
stamp()
e("v_lshrrev_b32 v1, 6, v0")
e("v_and_b32 v0, 63, v0")
e(f"v_readfirstlane_b32 s{sWAVE}, v1")
e("s_cmp_ge_u32 s2, 256")
e("s_cbranch_scc1 L_end")
e(f"s_and_b32 s{sH}, s2, 31")
e(f"s_lshr_b32 s{sS}, s2, 5")
e(f"s_mov_b32 s{SRD_WS+2}, {WS_BYTES}")
e(f"s_mov_b32 s{SRD_WS+3}, 0x20000")
e(f"s_cmp_ge_u32 s{sWAVE}, 2")
e("s_cbranch_scc1 L_stream")

prio(3)
if not A.nopf:
    e("s_getpc_b64 s[52:53]")
    lab("L_pc")
    e("v_lshlrev_b32 v1, 7, v0")
    e(f"v_min_u32 v1, L_codeend-L_pc-4, v1")
    e("global_load_dword v150, v1, s[52:53]")
e(f"s_mov_b32 s{SRD_X+2}, 1280")
e(f"s_mov_b32 s{SRD_X+3}, 0x20000")
e(f"s_mov_b32 s{SRD_WA+3}, 0x20000")
e(f"s_mov_b32 s{SRD_WB+3}, 0x20000")
e(f"s_cmp_lt_u32 s{sH}, 27")
e(f"s_cselect_b32 s57, {640*3456}, 0")
e(f"s_cmp_eq_u32 s{sWAVE}, 0")
e("s_movk_i32 s59, 3456")
e(f"s_cselect_b32 s56, 8192, s59")
e(f"s_cselect_b32 s{SRD_WA+2}, {640*8192}, s57")
e(f"s_cselect_b32 s{SRD_WB+2}, {640*8192}, 0")
e(f"s_cselect_b32 s{SRD_B+2}, 1280, s59")
e(f"s_cselect_b32 s57, 8, 7")
e(f"s_lshl_b32 s57, s{sH}, s57")
e(f"s_mul_i32 s58, s{sS}, 80")
e("s_mul_i32 s58, s58, s56")
e("s_add_u32 s58, s58, s57")
e("s_mul_i32 s59, s56, 10")
e(f"s_mul_i32 s60, s{sS}, 160")
e("v_lshrrev_b32 v8, 3, v0")
e("v_mul_lo_u32 v6, v8, s59")
e("v_and_b32 v8, 7, v0")
e("v_lshl_add_u32 v6, v8, 4, v6")
e("v_lshlrev_b32 v1, 4, v0")
e("v_lshlrev_b32 v7, 2, v0")
e("v_lshrrev_b32 v3, 4, v0")
e("v_bfe_u32 v4, v0, 1, 1")
e("v_lshl_add_u32 v8, v3, 1, v4")
e("v_mul_u32_u24 v8, 20, v8")
e(f"s_cmp_eq_u32 s{sWAVE}, 0")
e("s_waitcnt lgkmcnt(0)")
e(f"s_mov_b64 {sp(SRD_X)}, {sp(pX)}")
e(f"s_cselect_b64 {sp(SRD_WA)}, {sp(pWQ)}, {sp(pW1)}")
e(f"s_mov_b64 {sp(SRD_WB)}, {sp(pWQ)}")
e(f"buffer_load_dwordx4 v[12:15], v1, {srd(SRD_X)}, 0 offen")
e(f"buffer_load_dword v16, v7, {srd(SRD_X)}, 0 offen offset:1024")
e(f"buffer_load_dwordx4 v[18:21], v8, {srd(SRD_X)}, s60 offen")
e(f"buffer_load_dword v22, v8, {srd(SRD_X)}, s60 offen offset:16")
WR = [64 + 4*i for i in range(20)]
for rg in range(10):
    e(f"buffer_load_dwordx4 {r4(WR[2*rg])}, v6, {srd(SRD_WA)}, s58 offen{NT}")
    e(f"buffer_load_dwordx4 {r4(WR[2*rg+1])}, v6, {srd(SRD_WB)}, s58 offen offset:128{NT}")
    if rg < 9: e("s_add_u32 s58, s58, s56")
e("s_barrier")
stamp()
e(f"s_load_dword s{sTAG}, {sp(SRD_WS)}, {EPOCH}")
e(f"s_cmp_eq_u32 s{sWAVE}, 0")
e(f"s_cselect_b64 {sp(SRD_B)}, {sp(pB2)}, {sp(pB1)}")
e(f"s_mov_b32 s{SRD_B+3}, 0x20000")
e(f"s_mov_b64 {sp(SRD_OUT)}, {sp(pOUT)}")
e(f"s_mov_b32 s{SRD_OUT+2}, 1280")
e(f"s_mov_b32 s{SRD_OUT+3}, 0x20000")
e("v_bfe_u32 v2, v0, 2, 2")
e("v_and_b32 v5, 1, v0")
e("v_lshl_add_u32 v10, v2, 1, v5")
e("v_lshl_add_u32 v9, v4, 4, v10")
e("v_lshl_add_u32 v9, v3, 5, v9")
e("v_mov_b32 v147, 0")
e("s_cbranch_scc1 L_a_extra")
e("v_lshlrev_b32 v11, 1, v9")
e(f"buffer_load_ushort v23, v11, {srd(SRD_B)}, s57 offen")
e(f"buffer_load_ushort v144, v11, {srd(SRD_B)}, s57 offen offset:16")
e("s_branch L_extra_done")
lab("L_a_extra")
e(f"s_lshr_b32 s61, s{sH}, 3")
e("s_lshl_b32 s61, s61, 5")
e(f"s_and_b32 s62, s{sH}, 7")
e("s_add_u32 s61, s61, s62")
e(f"s_lshl_b32 s62, s{sH}, 1")
e("s_add_u32 s62, s62, 32")
e(f"s_cmp_lt_u32 s{sH}, 16")
e("s_cselect_b32 s61, s61, s62")
e("s_cselect_b32 s62, 32, 2")
e("s_lshl_b32 s61, s61, 1")
e("s_add_u32 s61, s61, s60")
e("v_mul_lo_u32 v11, v4, s62")
e("v_lshl_add_u32 v11, v5, 4, v11")
e(f"buffer_load_ushort v23, v11, {srd(SRD_X)}, s61 offen")
e(f"buffer_load_ushort v144, v11, {srd(SRD_B)}, s61 offen")
e("v_mov_b32 v146, 0xff800000")
e(f"ds_write_b64 v147, v[146:147] offset:{MSLOT}")
lab("L_extra_done")
e("v_lshlrev_b32 v60, 4, v5")
e("v_mov_b32 v61, 0xffff")
e("v_lshlrev_b32 v61, v60, v61")
for i in range(4): e(f"v_mov_b32 v{56+i}, 0")
e("s_nop 0")
for i in range(4):
    e(f"v_mov_b32_dpp v{56+i}, v61 quad_perm:[0,1,2,3] row_mask:0xf bank_mask:{1<<i:#x}")
e("s_mov_b32 s68, 0xcccccccc")
e("s_mov_b32 s69, 0xcccccccc")
e("s_waitcnt vmcnt(24)")
for k, r in enumerate([12, 13, 14, 15, 16]):
    e(f"v_lshlrev_b32 v{24+2*k}, 16, v{r}")
    e(f"v_and_b32 v{25+2*k}, 0xffff0000, v{r}")
e("v_readfirstlane_b32 s55, v24")
e("s_nop 1")
for k in range(10):
    e(f"v_subrev_f32 v{24+k}, s55, v{24+k}")
e("v_add_f32 v34, v24, v25")
e("v_mul_f32 v35, v24, v24")
e("v_fmac_f32 v35, v25, v25")
for k in range(2, 10):
    e(f"v_add_f32 v34, v34, v{24+k}")
    e(f"v_fmac_f32 v35, v{24+k}, v{24+k}")
for ctl in ["quad_perm:[1,0,3,2]", "quad_perm:[2,3,0,1]", "row_half_mirror", "row_mirror"]:
    e("s_nop 0")
    e(f"v_add_f32_dpp v34, v34, v34 {ctl} {DPPM}")
    e(f"v_add_f32_dpp v35, v35, v35 {ctl} {DPPM}")
for sw in ["v_permlane16_swap_b32", "v_permlane32_swap_b32"]:
    e("v_mov_b32 v36, v34")
    e("v_mov_b32 v37, v35")
    e("s_nop 1")
    e(f"{sw} v34, v36")
    e(f"{sw} v35, v37")
    e("s_nop 0")
    e("v_add_f32 v34, v34, v36")
    e("v_add_f32 v35, v35, v37")
e(f"v_mul_f32 v34, {f2u(1/640):#x}, v34")
e(f"v_mul_f32 v35, {f2u(1/640):#x}, v35")
e("v_fma_f32 v35, -v34, v34, v35")
e("v_max_f32 v35, 0, v35")
e("v_add_f32 v34, s55, v34")
e("v_cvt_pk_bf16_f32 v34, v34, v35")
e("v_and_b32 v35, 0xffff0000, v34")
e("v_lshlrev_b32 v34, 16, v34")
e(f"v_add_f32 v35, {f2u(1e-5):#x}, v35")
e("v_cvt_pk_bf16_f32 v35, v35, v35")
e("v_and_b32 v35, 0xffff0000, v35")
e("v_sqrt_f32 v35, v35")
e("s_waitcnt vmcnt(22)")
e("v_cvt_pk_bf16_f32 v35, v35, v35")
e("v_and_b32 v35, 0xffff0000, v35")
e("v_rcp_f32 v35, v35")
stamp()
vmleft = 22
for k, r in enumerate([18, 19, 20, 21, 22]):
    e(f"v_lshlrev_b32 v36, 16, v{r}")
    e(f"v_and_b32 v37, 0xffff0000, v{r}")
    e("v_sub_f32 v36, v36, v34")
    e("v_sub_f32 v37, v37, v34")
    e("v_cvt_pk_bf16_f32 v36, v36, v37")
    e("v_and_b32 v37, 0xffff0000, v36")
    e("v_lshlrev_b32 v36, 16, v36")
    e("v_mul_f32 v36, v36, v35")
    e("v_mul_f32 v37, v37, v35")
    e("v_cvt_pk_bf16_f32 v36, v36, v36")
    e("v_cvt_pk_bf16_f32 v37, v37, v37")
    bb = 24 if k % 2 == 0 else 40
    for j in range(2):
        for i in range(4):
            e(f"v_and_b32 v{bb+4*j+i}, v{36+j}, v{56+i}")
    for j in range(2):
        rg = 2*k + j
        for a in range(2):
            vmleft -= 1
            e(f"s_waitcnt vmcnt({vmleft})")
            c = "0" if rg == 0 else r4(48 + 4*a)
            e(f"v_mfma_f32_16x16x32_bf16 {r4(48+4*a)}, {r4(WR[2*rg+a])}, {r4(bb+4*j)}, {c}")
assert vmleft == 2
e("s_waitcnt lgkmcnt(0)")
e(f"s_mul_i32 s{sTAG}, s{sTAG}, 1664525")
e(f"s_add_u32 s{sTAG}, s{sTAG}, 1013904223")
e(f"s_lshl_b32 s56, s{sH}, 13")
e(f"s_lshl_b32 s57, s{sS}, 10")
e(f"s_mul_i32 s58, s{sWAVE}, {H1H-H1Q}")
e("s_add_u32 s58, s58, s56")
e(f"s_add_u32 s58, s58, {H1Q}")
e("s_add_u32 s60, s58, s57")
e(f"s_add_u32 s59, s60, {LOC}")
e(f"v_mov_b32 v41, s{sTAG}")
e(f"v_mov_b32 v43, s{sTAG}")
for r in range(4):
    e(f"v_permlane32_swap_b32 v{48+r}, v{52+r}")
e("s_nop 0")
e(f"v_add_f32_dpp v48, v52, v48 quad_perm:[2,3,0,1] {DPPM}")
e(f"v_add_f32_dpp v49, v53, v49 quad_perm:[2,3,0,1] {DPPM}")
e(f"v_add_f32_dpp v50, v50, v54 quad_perm:[2,3,0,1] {DPPM}")
e(f"v_add_f32_dpp v51, v51, v55 quad_perm:[2,3,0,1] {DPPM}")
e(f"s_cmp_eq_u32 s{sWAVE}, 0")
e("s_cselect_b32 s67, -1, 0")
e("s_mov_b32 s66, -1")
e("v_cndmask_b32 v40, v48, v50, s[68:69]")
e("v_cndmask_b32 v42, v49, v51, s[68:69]")
e("s_mov_b64 exec, s[66:67]")
if A.dual1: e(f"buffer_store_dwordx4 v[40:43], v1, {srd(SRD_WS)}, s59 offen")
e(f"buffer_store_dwordx4 v[40:43], v1, {srd(SRD_WS)}, s60 offen sc1")
if not A.nobp: e("s_barrier")
stamp()
if A.stamps: e("s_mov_b32 s70, 0")

MAXSPIN = 100000
_pl = [0]
def spoll(base_sreg, lastoff_sreg, dual):
    k = _pl[0]
    e(f"s_add_u32 s52, s{SRD_WS}, s{base_sreg}")
    e(f"s_addc_u32 s53, s{SRD_WS+1}, 0")
    off = 1020
    if lastoff_sreg is not None:
        e(f"s_add_u32 s52, s52, s{lastoff_sreg}")
        e(f"s_addc_u32 s53, s53, 0")
        off = 0
    e(f"s_mov_b32 s{sTAG+1}, s{sTAG}")
    e("s_mov_b32 s54, 0")
    lab(f"L_sp{k}")
    if dual:
        e(f"s_add_u32 s12, s52, {LOC}")
        e(f"s_addc_u32 s13, s53, 0")
        for p in range(8):
            e(f"s_load_dword s{24+p}, s[12:13], {p*1024 + off} glc")
    for p in range(8):
        e(f"s_load_dword s{16+p}, s[52:53], {p*1024 + off} glc")
    e("s_add_u32 s54, s54, 1")
    e("s_mov_b32 s63, 0")
    e(f"s_cmp_gt_u32 s54, {MAXSPIN}")
    e("s_waitcnt lgkmcnt(0)")
    e(f"s_cbranch_scc1 L_spd{k}")
    if dual:
        e(f"s_mov_b32 s63, {LOC}")
        for p in range(4):
            e(f"s_cmp_eq_u64 s[{24+2*p}:{25+2*p}], s[{sTAG}:{sTAG+1}]")
            e(f"s_cbranch_scc0 L_spg{k}")
        e(f"s_branch L_spd{k}")
        lab(f"L_spg{k}")
        e("s_mov_b32 s63, 0")
    for p in range(4):
        e(f"s_cmp_eq_u64 s[{16+2*p}:{17+2*p}], s[{sTAG}:{sTAG+1}]")
        e(f"s_cbranch_scc0 L_sp{k}")
    lab(f"L_spd{k}")
def poll(loads, execreg="-1", mid=None, first=None, retry=None, sleep=0):
    k = _pl[0]; _pl[0] += 1
    e("s_mov_b32 s7, 0")
    lab(f"L_poll{k}")
    for (r, vo, so, imm) in loads:
        e(f"buffer_load_dwordx4 v[{r}:{r+3}], v{vo}, {srd(SRD_WS)}, s{so} offen offset:{imm} sc1")
    if first:
        e("s_cmp_lg_u32 s7, 0")
        e(f"s_cbranch_scc1 L_nf{k}")
        first()
        lab(f"L_nf{k}")
    e("s_add_u32 s7, s7, 1")
    for j, (r, vo, so, imm) in enumerate(loads):
        e(f"s_waitcnt vmcnt({len(loads)-1-j})")
        if j == 0 and mid: mid()
        e(f"v_cmpx_eq_u32 vcc, s{sTAG}, v{r+1}")
        e(f"v_cmpx_eq_u32 vcc, s{sTAG}, v{r+3}")
    e("s_nop 1")
    e(f"s_cmp_eq_u64 exec, {execreg}")
    e(f"s_mov_b64 exec, {execreg}")
    e(f"s_cbranch_scc1 L_polldone{k}")
    if retry: retry()
    if sleep: e(f"s_sleep {sleep}")
    e(f"s_cmp_lt_u32 s7, {MAXSPIN}")
    e(f"s_cbranch_scc1 L_poll{k}")
    e("s_endpgm")
    lab(f"L_polldone{k}")
    if A.stamps:
        e(f"s_lshl_b32 s7, s7, {8*(k%4)}")
        e(f"s_or_b32 s70, s70, s7")

G = [64 + 4*i for i in range(12)]
e(f"s_lshl_b32 s55, s{sWAVE}, 9")
e("s_sub_u32 s55, 1020, s55")
spoll(58, 55, A.dual1)
e("s_add_u32 s58, s58, s63")
e("s_add_u32 s59, s58, 4096")
stamp()
if A.stamps:
    e("s_lshr_b32 s71, s63, 17")
poll([(G[p], 1, 58 + p//4, (p % 4)*1024) for p in range(8)], "s[66:67]", first=(lambda: e("s_barrier")))
stamp()
for p in range(1, 8):
    e(f"v_add_f32 v{G[0]}, v{G[0]}, v{G[p]}")
    e(f"v_add_f32 v{G[0]+2}, v{G[0]+2}, v{G[p]+2}")
e(f"v_cvt_pk_bf16_f32 v48, v{G[0]}, v{G[0]+2}")
e(f"s_cmp_eq_u32 s{sWAVE}, 0")
e("s_cbranch_scc1 L_a")
e("v_and_b32 v49, 0xffff0000, v48")
e("v_lshlrev_b32 v48, 16, v48")
e("v_lshlrev_b32 v50, 16, v23")
e("v_lshlrev_b32 v51, 16, v144")
e("v_add_f32 v48, v48, v50")
e("v_add_f32 v49, v49, v51")
e("v_cvt_pk_bf16_f32 v48, v48, v49")
e("v_and_b32 v49, 0xffff0000, v48")
e("v_lshlrev_b32 v48, 16, v48")
C1 = -2*math.sqrt(2/math.pi)*math.log2(math.e)
e(f"s_mov_b32 s62, {f2u(C1*0.044715):#x}")
e(f"v_mov_b32 v52, {f2u(C1):#x}")
P2 = [(48, 50), (49, 51)]
for (u, t) in P2: e(f"v_mul_f32 v{t}, v{u}, v{u}")
for (u, t) in P2: e(f"v_fma_f32 v{t}, v{t}, s62, v52")
for (u, t) in P2: e(f"v_mul_f32 v{t}, v{t}, v{u}")
for (u, t) in P2: e(f"v_exp_f32 v{t}, v{t}")
e("v_lshlrev_b32 v9, 2, v9")
for (u, t) in P2: e(f"v_add_f32 v{t}, 1.0, v{t}")
for (u, t) in P2: e(f"v_rcp_f32 v{t}, v{t}")
e("s_nop 0")
for (u, t) in P2: e(f"v_mul_f32 v{u}, v{u}, v{t}")
e("v_cvt_pk_bf16_f32 v48, v48, v48")
e("v_cvt_pk_bf16_f32 v49, v49, v49")
e(f"v_add_u32 v9, {HDUP}, v9")
e("ds_write2_b32 v9, v48, v49 offset0:0 offset1:8")
e("s_waitcnt lgkmcnt(0)")
if A.stamps:
    stamp()
    flush_stamps(3, extra=(70, 71))
e("s_endpgm")
lab("L_a")
nstamp[0] = 6
e("v_lshlrev_b32 v8, 1, v9")
e(f"ds_write_b16 v8, v48 offset:{QB}")
e(f"ds_write_b16_d16_hi v8, v48 offset:{QB+16}")
e("s_waitcnt lgkmcnt(0)")
e("s_barrier")
e("v_lshl_add_u32 v8, v3, 3, v10")
e("v_lshl_add_u32 v12, v8, 1, v4")
e("v_lshlrev_b32 v13, 3, v12")
e("v_add_u32 v14, 32, v10")
e("v_cmp_gt_u32 vcc, 32, v0")
e("v_and_b32 v15, 7, v0")
e("v_lshlrev_b32 v15, 4, v15")
e("v_cndmask_b32 v12, v14, v12, vcc")
e("v_lshlrev_b32 v12, 10, v12")
e("v_lshlrev_b32 v14, 2, v9")
e(f"v_add_u32 v14, {ODUP}, v14")
e(f"s_add_u32 s58, s56, {H3}")
e("s_add_u32 s60, s58, s57")
e("s_lshr_b32 s62, s56, 6")
e(f"s_add_u32 s62, s62, {H2}")
e("s_lshr_b32 s55, s57, 6")
e("s_add_u32 s55, s55, s62")
if A.dual3:
    e(f"s_add_u32 s20, s60, {LOC}")
    e(f"s_add_u32 s21, s55, {LOC}")
    e("s_add_u32 s58, s58, s63")
    e("s_add_u32 s62, s62, s63")
e("s_add_u32 s59, s58, 4096")
e(f"s_mul_i32 s64, s{sS}, 40960")
e(f"s_add_u32 s64, s64, {H4}")
e(f"s_lshl_b32 s65, s{sH}, 11")
e("s_add_u32 s65, s65, s64")
e(f"s_lshl_b32 s66, s{sH}, 4")
e("s_add_u32 s64, s64, s66")
e("s_mov_b32 s66, -1")
e("s_mov_b32 s67, 0x3333")
e(f"v_mov_b32 v45, s{sTAG}")
e(f"v_mov_b32 v47, s{sTAG}")
e("s_barrier")
stamp()
e("s_barrier")
stamp()
def sum8(off, d0, d1):
    for w in range(8):
        e(f"ds_read_b64 v[{24+2*w}:{25+2*w}], v13 offset:{off + w*512}")
    e("s_waitcnt lgkmcnt(6)")
    e("v_pk_add_f32 v[24:25], v[24:25], v[26:27]")
    e("s_waitcnt lgkmcnt(4)")
    e("v_pk_add_f32 v[28:29], v[28:29], v[30:31]")
    e("s_waitcnt lgkmcnt(2)")
    e("v_pk_add_f32 v[32:33], v[32:33], v[34:35]")
    e("v_pk_add_f32 v[24:25], v[24:25], v[28:29]")
    e("s_waitcnt lgkmcnt(0)")
    e("v_pk_add_f32 v[36:37], v[36:37], v[38:39]")
    e("v_pk_add_f32 v[24:25], v[24:25], v[32:33]")
    e(f"v_add_f32 v{d0}, v24, v36")
    e(f"v_add_f32 v{d1}, v25, v37")
e(f"ds_read_b64 v[48:49], v147 offset:{MSLOT}")
sum8(OPART, 40, 42)
e("v_mov_b32 v44, v48")
e("v_mov_b32 v46, v49")
if A.dual3:
    e(f"buffer_store_dwordx4 v[40:43], v1, {srd(SRD_WS)}, s20 offen")
    e("s_mov_b64 exec, 1")
    e(f"buffer_store_dwordx4 v[44:47], v1, {srd(SRD_WS)}, s21 offen")
    e("s_mov_b64 exec, -1")
e(f"buffer_store_dwordx4 v[40:43], v1, {srd(SRD_WS)}, s60 offen sc1")
e("s_mov_b64 exec, 1")
e(f"buffer_store_dwordx4 v[44:47], v1, {srd(SRD_WS)}, s55 offen sc1")
e("s_mov_b64 exec, -1")
stamp()
ST = G[8]
def weights():
    e(f"v_max_f32_dpp v50, v{ST}, v{ST} quad_perm:[1,0,3,2] {DPPM}")
    e("s_nop 1")
    e(f"v_max_f32_dpp v50, v50, v50 quad_perm:[2,3,0,1] {DPPM}")
    e("s_nop 1")
    e(f"v_max_f32_dpp v50, v50, v50 row_half_mirror {DPPM}")
    e(f"v_sub_f32 v51, v{ST}, v50")
    e("v_mul_f32 v51, 0x3fb8aa3b, v51")
    e("v_exp_f32 v51, v51")
    e("s_nop 0")
    e(f"v_mul_f32 v52, v51, v{ST+2}")
    e("s_nop 1")
    e(f"v_add_f32_dpp v52, v52, v52 quad_perm:[1,0,3,2] {DPPM}")
    e("s_nop 1")
    e(f"v_add_f32_dpp v52, v52, v52 quad_perm:[2,3,0,1] {DPPM}")
    e("s_nop 1")
    e(f"v_add_f32_dpp v52, v52, v52 row_half_mirror {DPPM}")
    e("v_rcp_f32 v52, v52")
    e("s_nop 0")
    e("v_mul_f32 v51, v51, v52")
def retry3():
    e("s_cmp_eq_u32 s7, 16")
    e("s_cselect_b32 s22, s63, 0")
    e("s_sub_u32 s58, s58, s22")
    e("s_sub_u32 s59, s59, s22")
    e("s_sub_u32 s62, s62, s22")
if A.spoll3:
    assert not A.dual3
    spoll(58, None, False)
poll([(ST, 15, 62, 0)] + [(G[p], 1, 58 + p//4, (p % 4)*1024) for p in range(8)], "-1", mid=weights, retry=retry3 if A.dual3 else None)
stamp()
e("s_nop 1")
e(f"v_mul_f32_dpp v48, v51, v{G[0]} row_newbcast:0 {DPPM}")
e(f"v_mul_f32_dpp v49, v51, v{G[0]+2} row_newbcast:0 {DPPM}")
for p in range(1, 8):
    e(f"v_fmac_f32_dpp v48, v51, v{G[p]} row_newbcast:{p} {DPPM}")
    e(f"v_fmac_f32_dpp v49, v51, v{G[p]+2} row_newbcast:{p} {DPPM}")
e("v_cvt_pk_bf16_f32 v48, v48, v48")
e("v_cvt_pk_bf16_f32 v49, v49, v49")
e("ds_write2_b32 v14, v48, v49 offset0:0 offset1:8")
e("s_waitcnt lgkmcnt(0)")
e("s_barrier")
sum8(YPART, 44, 46)
e("s_mov_b64 exec, s[66:67]")
e(f"buffer_store_dwordx4 v[44:47], v12, {srd(SRD_WS)}, s64 offen offset:512 sc1")
e("s_mov_b64 exec, -1")
e("s_barrier")
stamp()
sum8(APART, 40, 42)
e("s_mov_b64 exec, s[66:67]")
e(f"buffer_store_dwordx4 v[40:43], v12, {srd(SRD_WS)}, s64 offen sc1")
e("s_mov_b64 exec, -1")
stamp()
e(f"s_cmp_ge_u32 s{sH}, 20")
e("s_cbranch_scc1 L_aend")
e("s_mov_b32 s66, 0xaaaaaaaa")
e("s_mov_b32 s67, 0xaaaaaaaa")
e("v_lshlrev_b32 v23, 16, v23")
e("v_lshlrev_b32 v144, 16, v144")
poll([(G[0], 1, 65, 0), (G[1], 1, 65, 1024)], sleep=A.h4sleep)
stamp()
a0, a1, a2, a3 = G[0], G[0]+2, G[1], G[1]+2
e(f"v_cndmask_b32 v48, v{a0}, v{a1}, s[66:67]")
e(f"v_cndmask_b32 v49, v{a1}, v{a0}, s[66:67]")
e(f"v_cndmask_b32 v51, v{a3}, v{a2}, s[66:67]")
e(f"v_cndmask_b32 v50, v{a2}, v{a3}, s[66:67]")
e(f"v_add_f32_dpp v48, v49, v48 quad_perm:[1,0,3,2] {DPPM}")
e(f"v_add_f32_dpp v50, v51, v50 quad_perm:[1,0,3,2] {DPPM}")
e("v_cndmask_b32 v49, v50, v48, s[68:69]")
e("v_cndmask_b32 v48, v48, v50, s[68:69]")
e("s_nop 0")
e(f"v_add_f32_dpp v48, v49, v48 quad_perm:[2,3,0,1] {DPPM}")
e("s_nop 1")
e(f"v_add_f32_dpp v48, v48, v48 row_ror:4 {DPPM}")
e("s_nop 1")
e(f"v_add_f32_dpp v48, v48, v48 row_ror:8 {DPPM}")
e("v_mov_b32 v49, v48")
e("s_nop 1")
e("v_permlane16_swap_b32 v48, v49")
e("s_nop 0")
e("v_add_f32 v48, v48, v49")
e("v_mov_b32 v49, v48")
e("s_nop 1")
e("v_permlane32_swap_b32 v48, v49")
e("s_nop 0")
e("v_cvt_pk_bf16_f32 v48, v48, v49")
e("v_and_b32 v49, 0xffff0000, v48")
e("v_lshlrev_b32 v48, 16, v48")
e("v_add_f32 v48, v23, v48")
e("v_add_f32 v49, v49, v144")
e("v_cvt_pk_bf16_f32 v48, v48, v49")
e("v_and_b32 v49, 0xffff0000, v48")
e("v_lshlrev_b32 v48, 16, v48")
e("v_add_f32 v48, v48, v49")
e("v_cvt_pk_bf16_f32 v48, v48, v48")
e("s_mov_b64 exec, 0xf")
e(f"buffer_store_short v48, v11, {srd(SRD_OUT)}, s61 offen")
e("s_cmp_lg_u32 s2, 0")
e("s_cbranch_scc1 L_aend")
e("s_mov_b64 exec, 1")
e(f"buffer_store_dword v41, v147, {srd(SRD_WS)}, 0 offen offset:{EPOCH} sc1")
if A.amp >= 0:
    nstamp[0] = 13
    e("s_waitcnt vmcnt(0)")
    stamp()
    e("s_memrealtime s[60:61]")
    e("s_waitcnt lgkmcnt(0)")
    e(f"s_sub_u32 s62, s{STAMP_S0+2*A.amp}, s{STAMP_S0}")
    e("s_lshl_b32 s62, s62, 2")
    lab("L_amp")
    e("s_memrealtime s[64:65]")
    e("s_waitcnt lgkmcnt(0)")
    e("s_sub_u32 s63, s64, s60")
    e("s_cmp_lt_u32 s63, s62")
    e("s_cbranch_scc1 L_amp")
lab("L_aend")
if A.stamps:
    e("s_waitcnt vmcnt(0)")
    nstamp[0] = 13
    stamp()
    flush_stamps(2, extra=(70, 71))
lab("L_end")
e("s_endpgm")

lab("L_stream")
inA[0] = False
nstamp[0] = 1
prio(2)
vL = 0
vOK, vOV, vOW = 1, 2, 3
vM = [4, 5, 6, 7]
vT = [8, 9, 10, 11, 12, 13]
vAP, vAQ, vAW, vAH = 14, 15, 16, 17
vK = [20 + 4*i for i in range(8)]
vV = [52 + 4*i for i in range(8)]
vW = [84 + 4*i for i in range(6)]
vQB = [108 + 4*i for i in range(4)]
vB = [124, 128, 132]
vD = [136, 140, 144, 148]
NV = 152
e(f"s_sub_u32 s{sWAVE}, s{sWAVE}, 2")
e(f"s_lshl_b32 s58, s{sH}, 21")
e(f"s_lshl_b32 s53, s{sS}, 16")
e("s_add_u32 s58, s58, s53")
e(f"s_lshl_b32 s53, s{sWAVE}, 13")
e("s_add_u32 s58, s58, s53")
e(f"s_add_u32 s58, s58, {6144*256}")
e("s_add_u32 s59, s58, 4096")
e(f"v_bfe_u32 v{vT[0]}, v{vL}, 2, 2")
e(f"v_lshrrev_b32 v{vT[1]}, 4, v{vL}")
e(f"v_and_b32 v{vT[2]}, 3, v{vL}")
e(f"v_lshlrev_b32 v{vOK}, 8, v{vT[0]}")
e(f"v_lshl_add_u32 v{vOK}, v{vT[1]}, 6, v{vOK}")
e(f"v_lshl_add_u32 v{vOK}, v{vT[2]}, 4, v{vOK}")
e(f"v_lshlrev_b32 v{vOV}, 4, v{vL}")
e(f"s_mov_b32 s{SRD_K+2}, 0x4000000")
e(f"s_mov_b32 s{SRD_K+3}, 0x20000")
e(f"s_mov_b32 s{SRD_V+2}, 0x4000000")
e(f"s_mov_b32 s{SRD_V+3}, 0x20000")
e("s_waitcnt lgkmcnt(0)")
e(f"s_mov_b64 {sp(SRD_K)}, {sp(pK)}")
e(f"s_mov_b64 {sp(SRD_V)}, {sp(pV)}")
vm = []
def load_k():
    for t in range(8):
        e(f"buffer_load_dwordx4 {r4(vK[t])}, v{vOK}, {srd(SRD_K)}, s{58 + t//4} offen offset:{(t%4)*1024}{NT}")
        vm.append(f"k{t}")
def load_v(lo, hi):
    for t in range(lo, hi):
        e(f"buffer_load_dwordx4 {r4(vV[t])}, v{vOV}, {srd(SRD_V)}, s{58 + t//4} offen offset:{(t%4)*1024}{NT}")
        vm.append(f"v{t}")
def load_w():
    prio(0)
    for u in range(2):
        e(f"buffer_load_dwordx4 {r4(vW[4+u])}, v{vOW}, {srd(SRD_W2)}, s{66+u} offen{NT if A.wnt else ''}")
        vm.append(f"y{u}")
    for u in range(4):
        e(f"buffer_load_dwordx4 {r4(vW[u])}, v{vOW}, {srd(SRD_WO)}, s{62+u} offen{NT if A.wnt else ''}")
        vm.append(f"a{u}")
    prio(2)
def wait_vm(name):
    n = len(vm) - 1 - vm.index(name)
    e(f"s_waitcnt vmcnt({n})")
def load_kv(lo, hi):
    for j in range(lo, hi):
        if j == 8: prio(1)
        t = j % 8
        if j < 8:
            e(f"buffer_load_dwordx4 {r4(vK[t])}, v{vOK}, {srd(SRD_K)}, s{58 + t//4} offen offset:{(t%4)*1024}{NT}")
            vm.append(f"k{t}")
        else:
            e(f"buffer_load_dwordx4 {r4(vV[t])}, v{vOV}, {srd(SRD_V)}, s{58 + t//4} offen offset:{(t%4)*1024}{NT}")
            vm.append(f"v{t}")
e("s_barrier")
load_kv(0, A.n1)
stamp()
e(f"s_mov_b64 {sp(SRD_WO)}, {sp(pWO)}")
e(f"s_mov_b64 {sp(SRD_W2)}, {sp(pW2)}")
e(f"s_mov_b32 s{SRD_WO+2}, {4096*640*2}")
e(f"s_mov_b32 s{SRD_WO+3}, 0x20000")
e(f"s_mov_b32 s{SRD_W2+2}, {1728*640*2}")
e(f"s_mov_b32 s{SRD_W2+3}, 0x20000")
e(f"s_lshl_b32 s52, s{sH}, 7")
e(f"s_lshl_b32 s53, s{sWAVE}, 4")
e("s_add_u32 s52, s52, s53")
e("s_mul_i32 s62, s52, 1280")
e(f"s_mul_i32 s53, s{sS}, 160")
e("s_add_u32 s62, s62, s53")
e("s_add_u32 s63, s62, 5120")
e("s_add_u32 s64, s62, 10240")
e("s_add_u32 s65, s62, 15360")
e("s_lshr_b32 s52, s52, 1")
e("s_mul_i32 s66, s52, 1280")
e("s_add_u32 s66, s66, s53")
e("s_add_u32 s67, s66, 5120")
e(f"v_and_b32 v{vT[3]}, 15, v{vL}")
e(f"v_mul_u32_u24 v{vOW}, 1280, v{vT[1]}")
e(f"v_lshl_add_u32 v{vOW}, v{vT[3]}, 4, v{vOW}")
e(f"v_cmp_lt_u32 vcc, 9, v{vT[3]}")
e(f"v_bfrev_b32 v{vT[4]}, 2")
e(f"v_and_b32 v{vT[3]}, 1, v{vL}")
e(f"v_cndmask_b32 v{vOW}, v{vOW}, v{vT[4]}, vcc")
e(f"v_lshlrev_b32 v{vT[4]}, 4, v{vT[3]}")
e(f"v_mov_b32 v{vT[5]}, 0xffff")
e(f"v_lshlrev_b32 v{vT[5]}, v{vT[4]}, v{vT[5]}")
for i in range(4):
    e(f"v_mov_b32 v{vM[i]}, 0")
e("s_nop 0")
for i in range(4):
    e(f"v_mov_b32_dpp v{vM[i]}, v{vT[5]} quad_perm:[0,1,2,3] row_mask:0xf bank_mask:{1<<i:#x}")
e(f"v_lshl_add_u32 v{vAP}, v{vT[0]}, 1, v{vT[3]}")
e(f"v_lshl_add_u32 v{vAP}, v{vT[1]}, 3, v{vAP}")
e(f"s_lshl_b32 s53, s{sWAVE}, 5")
e(f"v_add_lshl_u32 v{vAP}, v{vAP}, s53, 4")
e(f"v_bfe_u32 v{vT[4]}, v{vL}, 1, 1")
e(f"v_lshl_add_u32 v{vAW}, v{vT[4]}, 2, v{vT[1]}")
e(f"s_lshl_b32 s53, s{sWAVE}, 3")
e(f"v_add_lshl_u32 v{vAH}, v{vAW}, s53, 2")
e(f"s_lshl_b32 s53, s{sWAVE}, 4")
e(f"v_add_lshl_u32 v{vAW}, v{vAW}, s53, 2")
e(f"v_lshl_add_u32 v{vAQ}, v{vT[1]}, 2, v{vT[2]}")
e(f"v_lshlrev_b32 v{vAQ}, 4, v{vAQ}")
for t in range(4):
    for r in range(4):
        e(f"v_mov_b32 v{vQB[t]+r}, 0")
e(f"v_mov_b32 v{vT[2]}, 0")
e("s_mov_b32 s68, 0xcccccccc")
e("s_mov_b32 s69, 0xcccccccc")
e("s_mov_b32 s70, 0x33333333")
e("s_mov_b32 s71, 0x33333333")
e("s_mov_b32 s56, 0x00010001")
e("s_mov_b32 s57, 0x00010001")
if not A.nobp: e("s_barrier")
load_kv(A.n1, A.n2)
e("s_barrier")
load_kv(A.n2, 16)
prio(2)
stamp()
e("s_barrier")
for t in range(4):
    m = 0x000f000f << (4*t)
    e(f"s_mov_b32 exec_lo, {m:#x}")
    e(f"s_mov_b32 exec_hi, {m:#x}")
    e(f"ds_read_b128 {r4(vQB[t])}, v{vAQ} offset:{QB}")
e("s_mov_b64 exec, -1")
e(f"ds_read_b32 v{vT[5]}, v{vAH} offset:{HDUP}")
if A.wpos == "afterBq": load_w()
e("s_waitcnt lgkmcnt(0)")
for t in range(8):
    wait_vm(f"k{t}")
    d = vD[t//4]
    c = "0" if t % 4 == 0 else r4(d)
    e(f"v_mfma_f32_16x16x32_bf16 {r4(d)}, {r4(vK[t])}, {r4(vQB[t%4])}, {c}")
stamp()
for i in range(4):
    e(f"v_and_b32 v{vB[2]+i}, v{vT[5]}, v{vM[i]}")
e("s_nop 3")
for k in range(2):
    e(f"v_mov_b32_dpp v{vT[k]}, v{vD[k]} quad_perm:[0,0,0,0] {DPPM}")
for c in range(1, 4):
    for k in range(2):
        e(f"v_add_f32_dpp v{vT[k]}, v{vD[k]+c}, v{vT[k]} quad_perm:[{c},{c},{c},{c}] {DPPM}")
e(f"v_cndmask_b32 v{vT[0]}, v{vT[0]}, v{vT[1]}, s[68:69]")
e(f"v_cvt_pk_bf16_f32 v{vT[0]}, v{vT[0]}, v{vT[0]}")
e(f"v_and_b32 v{vT[0]}, 0xffff0000, v{vT[0]}")
e(f"v_mul_f32 v{vT[0]}, 0x3db504f3, v{vT[0]}")
e(f"v_cvt_pk_bf16_f32 v{vT[0]}, v{vT[0]}, v{vT[0]}")
e(f"v_and_b32 v{vT[0]}, 0xffff0000, v{vT[0]}")
e("s_nop 1")
e(f"v_max_f32_dpp v{vT[1]}, v{vT[0]}, v{vT[0]} quad_perm:[2,3,0,1] {DPPM}")
e("s_nop 1")
e(f"v_max_f32_dpp v{vT[1]}, v{vT[1]}, v{vT[1]} row_ror:4 {DPPM}")
e("s_nop 1")
e(f"v_max_f32_dpp v{vT[1]}, v{vT[1]}, v{vT[1]} row_ror:8 {DPPM}")
e("s_mov_b64 exec, s[56:57]")
e(f"ds_max_f32 v{vT[2]}, v{vT[1]} offset:{MSLOT}")
e("s_mov_b64 exec, -1")
e("s_waitcnt lgkmcnt(0)")
e("s_barrier")
e(f"ds_read_b32 v{vT[1]}, v{vT[2]} offset:{MSLOT}")
if A.wpos == "afterBs": load_w()
e("s_waitcnt lgkmcnt(0)")
e(f"v_sub_f32 v{vT[0]}, v{vT[0]}, v{vT[1]}")
e(f"v_mul_f32 v{vT[0]}, 0x3fb8aa3b, v{vT[0]}")
e(f"v_exp_f32 v{vT[0]}, v{vT[0]}")
e("s_nop 1")
e(f"v_add_f32_dpp v{vT[1]}, v{vT[0]}, v{vT[0]} quad_perm:[2,3,0,1] {DPPM}")
e(f"v_cvt_pk_bf16_f32 v{vT[3]}, v{vT[0]}, v{vT[0]}")
e("s_nop 0")
e(f"v_add_f32_dpp v{vT[1]}, v{vT[1]}, v{vT[1]} row_ror:4 {DPPM}")
def pvb(t, i):
    n = 4*((i - t) & 3)
    if n == 0: e(f"v_and_b32 v{vK[t]+i}, v{vT[3]}, v{vM[i]}")
    else: e(f"v_and_b32_dpp v{vK[t]+i}, v{vT[3]}, v{vM[i]} row_ror:{n} {DPPM}")
pvb(0, 0); pvb(0, 1)
e(f"v_add_f32_dpp v{vT[1]}, v{vT[1]}, v{vT[1]} row_ror:8 {DPPM}")
e("s_mov_b64 exec, s[56:57]")
e(f"ds_add_f32 v{vT[2]}, v{vT[1]} offset:{LSLOT}")
e("s_mov_b64 exec, -1")
for t in range(4):
    for i in range(4):
        if (t, i) not in [(0, 0), (0, 1)]: pvb(t, i)
for u in range(8):
    wait_vm(f"v{u}")
    d = vD[u//4]
    c = "0" if u % 4 == 0 else r4(d)
    e(f"v_mfma_f32_16x16x32_bf16 {r4(d)}, {r4(vV[u])}, {r4(vK[u%4])}, {c}")
stamp()
def merge_write(d0, d1, off):
    e("s_nop 7")
    for r in range(4):
        e(f"v_add_f32_dpp v{d0+r}, v{d1+r}, v{d0+r} quad_perm:[2,3,0,1] {DPPM}")
    e("s_mov_b64 exec, s[70:71]")
    e(f"ds_write_b128 v{vAP}, {r4(d0)} offset:{off}")
    e("s_mov_b64 exec, -1")
merge_write(vD[0], vD[1], OPART)
e("s_waitcnt lgkmcnt(0)")
e("s_barrier")
for u in range(2):
    wait_vm(f"y{u}")
    e(f"v_mfma_f32_16x16x32_bf16 {r4(vD[2+u])}, {r4(vW[4+u])}, {r4(vB[2])}, 0")
merge_write(vD[2], vD[3], YPART)
e("s_waitcnt vmcnt(0) lgkmcnt(0)")
stamp()
e("s_barrier")
e(f"ds_read_b32 v{vT[0]}, v{vAW} offset:{ODUP}")
e(f"ds_read_b32 v{vT[1]}, v{vAW} offset:{ODUP+32}")
for k in range(2):
    e(f"s_waitcnt lgkmcnt({1-k})")
    for i in range(4):
        e(f"v_and_b32 v{vB[k]+i}, v{vT[k]}, v{vM[i]}")
for u in range(4):
    d = vD[u % 2]
    c = "0" if u < 2 else r4(d)
    e(f"v_mfma_f32_16x16x32_bf16 {r4(d)}, {r4(vW[u])}, {r4(vB[u//2])}, {c}")
merge_write(vD[0], vD[1], APART)
e("s_waitcnt lgkmcnt(0)")
e("s_barrier")
if A.stamps:
    stamp()
    e(f"s_cmp_eq_u32 s{sWAVE}, 0")
    e("s_cbranch_scc1 L_st0")
    e(f"s_cmp_lg_u32 s{sWAVE}, 7")
    e("s_cbranch_scc1 L_end2")
    flush_stamps(1)
    e("s_endpgm")
    lab("L_st0")
    flush_stamps(0)
    lab("L_end2")
e("s_endpgm")
lab("L_codeend")

text = HEADER + f"; @launch grid=(256,1,1) block=(640,1,1) lds={LDS_BYTES}\n"
text += f""".amdgcn_target "amdgcn-amd-amdhsa--gfx950"
.text
.globl {NAME}
.p2align 8
.type {NAME},@function
"""
text += "\n".join(L) + "\n"
text += f""".section .rodata,"a"
.p2align 6
.amdhsa_kernel {NAME}
  .amdhsa_next_free_vgpr {NV}
  .amdhsa_next_free_sgpr 102
  .amdhsa_accum_offset {(NV+3)//4*4}
  .amdhsa_group_segment_fixed_size 0
  .amdhsa_kernarg_size 104
  .amdhsa_user_sgpr_count 2
  .amdhsa_user_sgpr_kernarg_segment_ptr 1
  .amdhsa_system_sgpr_workgroup_id_x 1
  .amdhsa_float_denorm_mode_32 3
.end_amdhsa_kernel
"""
open(A.out, "w").write(text)
```
